```python
import torch

def _softmax(x, axis=-1):
    return torch.softmax(x, dim=axis)
def _gelu(x):
    return torch.nn.functional.gelu(x, approximate="tanh")
def _silu(x):
    return torch.nn.functional.silu(x)
def _sigmoid(x):
    return torch.sigmoid(x)
def _layernorm(x, axis=-1, eps=1e-5):
    m = x.mean(dim=axis, keepdim=True)
    v = x.var(dim=axis, keepdim=True, unbiased=False)
    return (x - m) / torch.sqrt(v + eps)
def _scatter_add(tgt, idx, src, axis=0):
    return tgt.clone().index_add_(axis, idx, src)
def _segment_sum(src, seg, n):
    out = torch.zeros((n,) + src.shape[1:], dtype=src.dtype)
    return out.index_add_(0, seg, src)
def _pad(x, pw):
    flat = tuple(v for pair in reversed(pw) for v in pair)
    return torch.nn.functional.pad(x, flat)

kernel_name = 'standalone__mha_block_cached__near_ridge'

def setup_inputs():

    _w = (lambda a: (lambda t: t.to(torch.bfloat16) if t.is_floating_point() else t)(torch.as_tensor(a)))
    B, Sq, D = 32, 208, 512
    H, Sk, Dh = 32, 512, 128
    return {
        "x": _w((lambda *s: torch.randn(*s, dtype=torch.bfloat16) * 0.8)(B, Sq, D)),
        "k_cache": _w((lambda *s: torch.randn(*s, dtype=torch.bfloat16) * 0.8)(B, H, Sk, Dh)),
        "v_cache": _w((lambda *s: torch.randn(*s, dtype=torch.bfloat16) * 0.05)(B, H, Sk, Dh)),
        "wq": _w((lambda *s: torch.randn(*s, dtype=torch.bfloat16) * 0.8)(D, H * Dh) * (D ** -0.5)),
        "wo": _w((lambda *s: torch.randn(*s, dtype=torch.bfloat16) * 0.05)(H * Dh, D) * ((H * Dh) ** -0.5)),
    }

def reference(x, k_cache, v_cache, wq, wo):
    B, Sq, D = x.shape
    H, Dh = 32, 128
    q = (lambda x, *d: x.permute(*d))((x @ wq).reshape(B, Sq, H, Dh), 0, 2, 1, 3)
    scores = torch.einsum("bhqd,bhkd->bhqk", q, k_cache) * (Dh ** -0.5)
    p = _softmax(scores, axis=-1)
    o = torch.einsum("bhqk,bhkd->bhqd", p, v_cache)
    return (lambda x, *d: x.permute(*d))(o, 0, 2, 1, 3).reshape(B, Sq, H * Dh) @ wo
```

```python
import re

def V(i, n=1): return [f"v{k}" for k in range(i, i+n)]
def A(i, n=1): return [f"a{k}" for k in range(i, i+n)]
def S(i, n=1): return [f"s{k}" for k in range(i, i+n)]
def rr(c, i, n):
    return f"{c}{i}" if n == 1 else f"{c}[{i}:{i+n-1}]"

class I:
    __slots__ = ("txt", "kind", "rd", "wr", "cost", "meta", "after_gap", "srcc", "dreg")
    def __init__(self, txt, kind, rd=(), wr=(), cost=None, **meta):
        self.txt = txt; self.kind = kind
        self.rd = list(rd); self.wr = list(wr)
        self.cost = cost if cost is not None else {"valu":4,"trans":8,"perm":4,"dsr":4,"dsw":4,"dma":4,"vmem":4,"salu":1,"mfma":8}.get(kind, 1)
        self.meta = meta
        self.srcc = meta.get("srcc", [])
        self.dreg = meta.get("dreg", None)
    def __repr__(self): return self.txt

def reg(cls, i, n): return (cls, i, n)
def regs(r): return [f"{r[0]}{k}" for k in range(r[1], r[1]+r[2])]
def rtxt(r): return rr(r[0], r[1], r[2])

def mfma(D, Aop, Bop, C):
    d = (D[0], D[1], 4); a = (Aop[0], Aop[1], 4); b = (Bop[0], Bop[1], 4)
    if C is None: c = d; ctxt = rtxt(d); crd = regs(d)
    elif C == 0: ctxt = "0"; crd = []
    else: c = (C[0], C[1], 4); ctxt = rtxt(c); crd = regs(c)
    key = (D[0], Aop[0], Bop[0])
    if D[0] == 'v' and Aop[0] == 'a':
        if C is None: txt = f"M{Bop[0]} {D[1]},{Aop[1]},{Bop[1]}"
        elif C == 0:  txt = f"Z{Bop[0]} {D[1]},{Aop[1]},{Bop[1]}"
        elif C[0] == 'v': txt = f"C{Bop[0]} {D[1]},{Aop[1]},{Bop[1]},{C[1]}"
        else: raise ValueError
    else:
        txt = f"v_mfma_f32_16x16x32_bf16 {rtxt(d)},{rtxt(a)},{rtxt(b)},{ctxt}"
    return I(txt, "mfma", rd=regs(a)+regs(b)+crd, wr=regs(d), srcc=crd, dreg=(d, C is None), ab=regs(a)+regs(b))

MACROS = r"""
.macro Ma d,a,b
v_mfma_f32_16x16x32_bf16 v[\d:\d+3],a[\a:\a+3],a[\b:\b+3],v[\d:\d+3]
.endm
.macro Mv d,a,b
v_mfma_f32_16x16x32_bf16 v[\d:\d+3],a[\a:\a+3],v[\b:\b+3],v[\d:\d+3]
.endm
.macro Za d,a,b
v_mfma_f32_16x16x32_bf16 v[\d:\d+3],a[\a:\a+3],a[\b:\b+3],0
.endm
.macro Zv d,a,b
v_mfma_f32_16x16x32_bf16 v[\d:\d+3],a[\a:\a+3],v[\b:\b+3],0
.endm
.macro Ca d,a,b,c
v_mfma_f32_16x16x32_bf16 v[\d:\d+3],a[\a:\a+3],a[\b:\b+3],v[\c:\c+3]
.endm
.macro Cv d,a,b,c
v_mfma_f32_16x16x32_bf16 v[\d:\d+3],a[\a:\a+3],v[\b:\b+3],v[\c:\c+3]
.endm
.macro TR d,r,o
ds_read_b64_tr_b16 a[\d:\d+1],v\r offset:\o
.endm
.macro RD d,r,o
ds_read_b128 a[\d:\d+3],v\r offset:\o
.endm
.macro EX d
v_exp_f32 v\d,v\d
.endm
.macro CV d,a,b
v_cvt_pk_bf16_f32 v\d,v\a,v\b
.endm
.macro DM p,s,o
global_load_lds_dwordx4 v\p,s[\s:\s+1] offset:\o nt
.endm
.macro AW d,s
v_accvgpr_write_b32 a\d,v\s
.endm
.macro AM d,s
v_accvgpr_mov_b32 a\d,a\s
.endm
.macro MU d,s
v_mul_f32 v\d,\s,v\d
.endm
.macro LG n
s_waitcnt lgkmcnt(\n)
.endm
"""

def ds_tr(da, vaddr, off, fence="LDSF"):
    assert 0 <= off < 65536, off
    return I(f"TR {da},{vaddr},{off}", "dsr", rd=[f"v{vaddr}", fence, "DSORD"], wr=A(da,2)+["DSORD"])
def ds_r128(da, vaddr, off, fence="LDSF"):
    assert 0 <= off < 65536, off
    return I(f"RD {da},{vaddr},{off}", "dsr", rd=[f"v{vaddr}", fence, "DSORD"], wr=A(da,4)+["DSORD"])
def ds_r128v(dv, vaddr, off, fence="LDSF"):
    assert 0 <= off < 65536, off
    return I(f"ds_read_b128 v[{dv}:{dv+3}],v{vaddr} offset:{off}", "dsr", rd=[f"v{vaddr}", fence, "DSORD"], wr=V(dv,4)+["DSORD"])
def ds_w128(vaddr, sv, off, fence="LDSF"):
    assert 0 <= off < 65536, off
    return I(f"ds_write_b128 v{vaddr},v[{sv}:{sv+3}] offset:{off}", "dsw", rd=[f"v{vaddr}", fence, "DSORD"]+V(sv,4), wr=["DSORD"])
def ds_w64(vaddr, sv, off, fence="LDSF"):
    assert 0 <= off < 65536, off
    return I(f"ds_write_b64 v{vaddr},v[{sv}:{sv+1}] offset:{off}", "dsw", rd=[f"v{vaddr}", fence, "DSORD"]+V(sv,2), wr=["DSORD"])
def dma(vpat, sbase, off, item=None):
    return I(f"DM {vpat},{sbase},{off}", "dma", rd=[f"v{vpat}", "m0", "LDSF", "VMORD"]+S(sbase,2), wr=["VMORD"], item=item)
def vexp(d): return I(f"EX {d}", "trans", rd=V(d), wr=V(d))
def vcvt(d, a, b): return I(f"CV {d},{a},{b}", "valu", rd=V(a)+V(b), wr=V(d))
def valu(txt, rd, wr, kind="valu"): return I(txt, kind, rd=rd, wr=wr)
def salu(txt, rd, wr): return I(txt, "salu", rd=rd, wr=wr)
def accw(da, sv): return I(f"AW {da},{sv}", "valu", rd=V(sv), wr=A(da))
def accm(da, sa): return I(f"AM {da},{sa}", "valu", rd=A(sa), wr=A(da))
def vmul_s(d, s): return I(f"MU {d},{s}", "valu", rd=V(d)+([s] if s.startswith('s') or s.startswith('v') else []), wr=V(d))
def perm32(a, b): return I(f"v_permlane32_swap_b32 v{a},v{b}", "perm", rd=V(a)+V(b), wr=V(a)+V(b))
def perm16(a, b): return I(f"v_permlane16_swap_b32 v{a},v{b}", "perm", rd=V(a)+V(b), wr=V(a)+V(b))
def barrier(vm=None, needs=None):
    w = "s_waitcnt " + (f"vmcnt({vm}) " if vm is not None else "") + "lgkmcnt(0)"
    return [I(w, "wait", rd=[], wr=["LDSF", "DSORD"], anchor=True, vm=vm, lgkm=0, needs=needs),
            I("s_barrier", "bar", rd=[], wr=["LDSF"], anchor=True)]
def raw(txt, kind="salu", rd=(), wr=(), **meta): return I(txt, kind, rd=rd, wr=wr, **meta)

def is_anchor(ins): return ins.kind == "mfma" or ins.meta.get("anchor", False)

def schedule(region, gapbudget=8, lat_ds=7, mfma_to_valu=4, maxsalu=2, window=6):
    n = len(region)
    preds = [set() for _ in range(n)]; succs = [set() for _ in range(n)]
    rawm = [set() for _ in range(n)]
    last_w = {}; readers = {}
    for i, ins in enumerate(region):
        for r in ins.rd:
            if r in last_w:
                preds[i].add(last_w[r])
                if region[last_w[r]].kind == "mfma" and ins.kind != "mfma": rawm[i].add(last_w[r])
        for r in ins.wr:
            if r in last_w:
                preds[i].add(last_w[r])
                if region[last_w[r]].kind == "mfma" and ins.kind != "mfma": rawm[i].add(last_w[r])
            for j in readers.get(r, ()):
                if j != i: preds[i].add(j)
        for r in ins.rd: readers.setdefault(r, []).append(i)
        for r in ins.wr: last_w[r] = i; readers[r] = []
    for i in range(n):
        preds[i].discard(i)
        for p in preds[i]: succs[p].add(i)
    anchors = [i for i in range(n) if is_anchor(region[i])]
    apos = {}; k = 0
    for i in anchors:
        apos[i] = k
        if region[i].kind == "mfma": k += 1
    nm = k
    dl = [None]*n
    for i in range(n-1, -1, -1):
        if i in apos: dl[i] = apos[i]; continue
        d = nm + 1000
        for s in succs[i]:
            ki, ks = region[i].kind, region[s].kind
            lat = 0
            if ki == "dsr" and any(r in region[s].rd for r in region[i].wr if r != "DSORD"): lat = lat_ds
            elif ki in ("trans","valu","perm") and ks == "mfma": lat = 1
            elif ki == "trans": lat = 1
            elif ki in ("valu","perm") and ks == "perm": lat = 1
            d = min(d, dl[s] - lat)
        dl[i] = d + region[i].meta.get("dl_bias", 0)
    emitted = [False]*n; out = []; gap_of = [None]*n
    npend = [len(preds[i]) for i in range(n)]
    ready = set(i for i in range(n) if npend[i] == 0 and i not in apos)
    cur_gap = [0]
    def emit(i):
        emitted[i] = True; gap_of[i] = cur_gap[0]; out.append(region[i])
        ready.discard(i)
        for s in succs[i]:
            npend[s] -= 1
            if npend[s] == 0 and s not in apos: ready.add(s)
    def force(i):
        stack = sorted(p for p in preds[i] if not emitted[p])
        for p in stack:
            if emitted[p]: continue
            assert p not in apos, f"anchor pred not emitted: {region[p]} before {region[i]}"
            force(p); emit(p)
    def earliest_ok(i):
        for p in rawm[i]:
            if cur_gap[0] < apos[p] + mfma_to_valu: return False
        if region[i].kind == "dsr" and cur_gap[0] < dl[i] - window: return False
        mg = region[i].meta.get("min_gap")
        if mg is not None and cur_gap[0] < mg: return False
        return True
    for a in anchors:
        force(a); emit(a)
        if region[a].kind != "mfma": continue
        cur_gap[0] = apos[a] + 1
        budget = gapbudget; nsalu = 0; nvm = 0; had_trans = False
        while True:
            cands = [i for i in ready if earliest_ok(i)]
            cands.sort(key=lambda i: (dl[i], i))
            pick = None
            for i in cands:
                ins = region[i]
                if ins.kind == "salu":
                    if nsalu < maxsalu: pick = i; break
                    continue
                if ins.kind in ("dma", "vmem") and nvm >= 1: continue
                if had_trans: continue
                if ins.cost <= budget: pick = i; break
            if pick is None: break
            ins = region[pick]
            if ins.kind == "salu": nsalu += 1
            else:
                budget -= ins.cost
                if ins.kind == "trans": had_trans = True
                if ins.kind in ("dma", "vmem"): nvm += 1
            emit(pick)
    for i in range(n):
        if not emitted[i]:
            force(i); emit(i)
    return out

def insert_lgkm(seq, pend=None):
    out = []; pend = [] if pend is None else pend
    for ins in seq:
        if ins.kind == "wait" and ins.meta.get("lgkm") is not None:
            k = ins.meta["lgkm"]; pend = pend[len(pend)-k:] if k else []
            out.append(ins); continue
        touch = set(r for r in ins.rd + ins.wr if r[0] in "va" and r[1:].isdigit())
        need = -1
        for j, d in enumerate(pend):
            if d & touch: need = j
        if need >= 0:
            nleft = len(pend) - need - 1
            out.append(I(f"LG {nleft}", "wait", lgkm=nleft, auto=True))
            pend = pend[need+1:]
        if ins.kind == "dsr":
            pend.append(set(r for r in ins.wr if r != "DSORD"))
        elif ins.kind == "dsw":
            pend.append(set())
        assert len(pend) <= 15, "lgkmcnt overflow"
        out.append(ins)
    return out, pend

def is_valu(k): return k in ("valu", "trans", "perm")
def need_states(P, C):
    pw = set(P.wr); pr = set(P.rd); cr = set(C.rd); cw = set(C.wr)
    reg = lambda s: set(r for r in s if r[0] in "va" and r[1:].isdigit())
    n = 0
    if is_valu(P.kind):
        if C.kind == "mfma" and reg(pw) & reg(cr): n = max(n, 2)
        if C.kind == "perm" and reg(pw) & reg(cr): n = max(n, 2)
        if P.kind == "trans" and C.kind in ("valu", "perm") and reg(pw) & reg(cr): n = max(n, 1)
        sw = set(r for r in pw if (r[0] == "s" and r[1:].isdigit()) or r == "vcc")
        if sw:
            if is_valu(C.kind) and sw & cr: n = max(n, 2)
            if C.kind in ("dma", "vmem") and sw & cr: n = max(n, 5)
            if C.kind in ("salu", "branch") and sw & cr: n = max(n, 1)
        if C.meta.get("readlane") and reg(pw) & reg(cr): n = max(n, 1)
    if P.kind == "mfma":
        D = reg(pw)
        if C.kind == "mfma":
            if D & set(C.meta["ab"]): n = max(n, 8)
            if D & set(C.srcc):
                same = C.dreg[1] and C.dreg[0] == P.dreg[0]
                if not same: n = max(n, 6)
            elif D & reg(cw):
                n = max(n, 6)
        elif is_valu(C.kind) or C.kind in ("dsr", "dsw", "vmem", "dma"):
            if D & (reg(cr) | reg(cw)): n = max(n, 8)
        if is_valu(C.kind) and set(P.srcc) & reg(cw): n = max(n, 3)
    if P.kind == "salu" and "m0" in pw and C.kind == "dma": n = max(n, 1)
    if P.kind == "vmem" and P.meta.get("store") and is_valu(C.kind) and reg(pr) & reg(cw): n = max(n, 2)
    return n
def states_of(ins):
    if ins.kind == "nop": return ins.meta["n"]
    if ins.kind == "label": return 0
    return 1
def fix_hazards(seq, hist=None, check_only=False):
    hist = [] if hist is None else list(hist)
    out = []; viol = []
    for ins in seq:
        if ins.kind != "label":
            dist = 0; need = 0
            for P in reversed(hist):
                r = need_states(P, ins)
                if r - dist > need: need = r - dist; culprit = P
                dist += states_of(P)
                if dist >= 10: break
            if need > 0:
                if check_only: viol.append((culprit, ins, need))
                else:
                    nop = I(f"s_nop {need-1}", "nop", n=need)
                    out.append(nop); hist.append(nop)
        out.append(ins); hist.append(ins)
        if len(hist) > 24: hist = hist[-24:]
    return out, hist, viol
```

```python
import sys, math, struct
sys.path.insert(0, "gen")
from asmlib import *

SL = 16896
PC = 1056
R1 = 8*SL
OFF_Q13 = [16384, 16384+4096, 16384+8192, 0]
OFF_P13 = 4096
LDS_BYTES = 163840
NAME = "standalone__mha_block_cached__near_ridge"

sX, sK0, sV0, sWQ, sWO, sWS, sB, sVB = 4, 6, 8, 10, 12, 14, 16, 18
sPass, sCnt, sKa, sKb, sVa, sVb, sScale, sThr = 20, 21, 22, 23, 24, 25, 26, 27
sT0, sT1, sT2, sT3 = 28, 29, 30, 31
sST = 32
sHead = 34
sDbg = 36
ACC = 0
def acc(dt, qt): return ACC + 12*dt + 4*qt
def acc13(e): return ACC + 96 + 4*e
QT = 104
LACC = 104
SREG = 120
PREG = 152
CREG = 200
vPatV = 216
vK0, vV0 = 220, 221
vT = 224
vAX, vAL, vPat, vAK, vTmp = 248, 249, 250, 254, 255
def T(k, s, qt): return 48*k + 12*s + 4*qt
def XF(s, qt): return 12*s + 4*qt
POOL = 192
def pool(sg, i): return POOL + 16*sg + 4*i
B13 = 224
ONES = 240
P13 = 244

SCALE = math.log2(math.e) / math.sqrt(128.0)
def f2u(x): return struct.unpack("<I", struct.pack("<f", x))[0]

class Prog:
    def __init__(self, w):
        self.w = w; self.main = []; self.ool = []; self.hist = []; self.pend = []
    def lbl(self, name): return f"{name}_w{self.w}"
    def add(self, seq, sched=False, **kw):
        if sched: seq = schedule(seq, **kw)
        seq, self.pend = insert_lgkm(seq, self.pend)
        seq, self.hist, _ = fix_hazards(seq, self.hist)
        self.main += seq
    def label(self, name):
        self.main.append(I(f"{self.lbl(name)}:", "label"))
    def add_ool(self, name, seq, back):
        s = [I(f"{self.lbl(name)}:", "label")] + [I("s_nop 1", "nop", n=2)] + list(seq)
        s, _, _ = fix_hazards(s, [])
        s += [I("s_nop 1", "nop", n=2), I(f"s_branch {self.lbl(back)}", "branch")]
        self.ool += s

def alt_anchor(p, name, cmp_txt, rd, wr, seq, skip=()):
    back = name + "_r"
    p.add_ool(name, seq, back)
    g = [I(cmp_txt, "salu", rd=rd, wr=["scc"], anchor=True),
         I(f"s_cbranch_scc1 {p.lbl(name)}", "branch", rd=["scc"], wr=list(wr), anchor=True)]
    g += list(skip)
    g += [I(f"{p.lbl(back)}:", "label", anchor=True, wr=list(wr))]
    return g

def lane_consts(w):
    L = []
    L.append(valu("v_and_b32 v255,63,v0", V(0), V(255)))
    L.append(valu(f"v_lshlrev_b32 v{vAL},4,v255", V(255), V(vAL)))
    L.append(valu(f"v_add_u32 v{vAL},{R1},v{vAL}", V(vAL), V(vAL)))
    return L
def lane_from_AL(dst):
    return [valu(f"v_subrev_u32 v{dst},{R1},v{vAL}", V(vAL), V(dst)),
            valu(f"v_lshrrev_b32 v{dst},4,v{dst}", V(dst), V(dst))]
def calc_aW(dst, lane, t0, t1):
    return [valu(f"v_bfe_u32 v{t0},v{lane},2,3", V(lane), V(t0)),
            valu(f"v_mul_u32_u24 v{dst},{PC},v{t0}", V(t0), V(dst)),
            valu(f"v_lshrrev_b32 v{t0},5,v{lane}", V(lane), V(t0)),
            valu(f"v_lshlrev_b32 v{t0},8,v{t0}", V(t0), V(t0)),
            valu(f"v_and_b32 v{t1},3,v{lane}", V(lane), V(t1)),
            valu(f"v_lshlrev_b32 v{t1},3,v{t1}", V(t1), V(t1)),
            valu(f"v_add3_u32 v{dst},v{dst},v{t0},v{t1}", V(dst)+V(t0)+V(t1), V(dst))]
def calc_aV(dst, lane, t0, t1):
    return [valu(f"v_lshrrev_b32 v{t0},2,v{lane}", V(lane), V(t0)),
            valu(f"v_mul_u32_u24 v{dst},{PC},v{t0}", V(t0), V(dst)),
            valu(f"v_and_b32 v{t1},3,v{lane}", V(lane), V(t1)),
            valu(f"v_lshl_add_u32 v{dst},v{t1},3,v{dst}", V(t1)+V(dst), V(dst))]
def calc_aK(dst, lane, t0, t1):
    return [valu(f"v_and_b32 v{t0},15,v{lane}", V(lane), V(t0)),
            valu(f"v_mul_u32_u24 v{dst},{PC},v{t0}", V(t0), V(dst)),
            valu(f"v_lshrrev_b32 v{t1},4,v{lane}", V(lane), V(t1)),
            valu(f"v_lshl_add_u32 v{dst},v{t1},4,v{dst}", V(t1)+V(dst), V(dst))]
def calc_pat(dst4, lane, t0, t1, tshift, jstep):
    L = [valu(f"v_lshrrev_b32 v{t0},4,v{lane}", V(lane), V(t0)),
         valu(f"v_lshlrev_b32 v{t0},{tshift},v{t0}", V(t0), V(t0)),
         valu(f"v_and_b32 v{t1},15,v{lane}", V(lane), V(t1)),
         valu(f"v_lshl_add_u32 v{dst4},v{t1},4,v{t0}", V(t0)+V(t1), V(dst4))]
    for j in range(1, 4):
        L.append(valu(f"v_add_u32 v{dst4+j},{j*jstep},v{dst4}", V(dst4), V(dst4+j)))
    return L
PAT_WQ = (17, 8192-256); PAT_KV = (12, 0); PAT_WO = (14, 1024-256)

def add64(dst, src, lit):
    return [salu(f"s_add_u32 s{dst},s{src},{lit}", S(src), S(dst)+["scc"]),
            salu(f"s_addc_u32 s{dst+1},s{src+1},0", S(src+1)+["scc"], S(dst+1)+["scc"])]
def add64s(dst, src, sreg):
    return [salu(f"s_add_u32 s{dst},s{src},s{sreg}", S(src)+S(sreg), S(dst)+["scc"]),
            salu(f"s_addc_u32 s{dst+1},s{src+1},0", S(src+1)+["scc"], S(dst+1)+["scc"])]

def dma_item_static(w, slot, vpat, sbase, item=None):
    L = []
    for j in range(4):
        m0 = slot*SL + (4*w + j)*PC - 256*j
        L.append(salu(f"s_mov_b32 m0,{m0}", [], ["m0"]))
        L.append(dma(vpat+j, sbase, 256*j, item=item))
    return L
def dma_item_dyn(w, sslot, vpat0, npat, sbase, item=None):
    L = [salu(f"s_add_u32 m0,s{sslot},{4*w*PC}", S(sslot), ["m0", "scc"])]
    for j in range(4):
        if j: L.append(salu(f"s_add_u32 m0,m0,{PC-256}", ["m0"], ["m0", "scc"]))
        L.append(dma(vpat0 + (j if npat == 4 else 0), sbase, 256*j, item=item))
    return L

def proj_reads(kind, slot, blk, sg):
    L = []
    base = (slot & 3)*SL
    for dtl in range(2):
        dt = 2*blk + dtl
        for p in range(2):
            for e in range(2):
                if kind == "W": off = base + e*8*PC + p*512 + dt*32
                else:           off = base + (2*p+e)*256 + dt*32
                L.append(ds_tr(pool(sg, 2*dtl+p) + 2*e, vAX, off))
    return L
def proj_mfmas(w, blk, sg, first, Bf, B13f):
    L = []
    for dtl in range(2):
        dt = 2*blk + dtl
        for qt in range(3):
            for p in range(2):
                L.append(mfma(('v', acc(dt, qt)), ('a', pool(sg, 2*dtl+p)), ('a', Bf(qt, p)), 0 if (first and p == 0) else None))
        if blk == w:
            for p in range(2):
                L.append(mfma(('v', acc13(dtl)), ('a', pool(sg, 2*dtl+p)), ('a', B13f(p)), 0 if (first and p == 0) else None))
    return L

def pass_body(p, phase):
    w = p.w
    kind = "W" if phase == "A" else "V"
    R = []
    def Bf(c):
        if phase == "A": return lambda qt, pp: XF(2*c+pp, qt)
        hh = c >> 1
        return lambda qt, pp: T((hh+1) & 3, 2*(c & 1)+pp, qt)
    def b13_reads(c):
        L = []
        for pp in range(2):
            if phase == "A": off = 1024*(2*c+pp)
            else: off = OFF_Q13[c >> 1] + 1024*(2*(c & 1)+pp)
            L.append(ds_r128(B13 + 8*(c & 1) + 4*pp, vAL, off))
        return L
    B13f = lambda c: (lambda pp: B13 + 8*(c & 1) + 4*pp)
    def dma_for(c):
        ch = c - 1
        L = []
        if phase == "A":
            altL = []
            if c == 1:
                altL += [valu(f"v_subrev_u32 v255,{R1},v{vAL}", V(vAL), V(255)),
                         valu(f"v_and_b32 v{vPat},0xf0,v255", V(255), V(vPat)),
                         valu(f"v_lshrrev_b32 v255,8,v255", V(255), V(255)),
                         valu(f"v_lshl_add_u32 v{vPat},v255,12,v{vPat}", V(255)+V(vPat), V(vPat))]
                altL += [valu(f"v_mov_b32 v{vPat+j},v{vPat}", V(vPat), V(vPat+j)) for j in range(1, 4)]
            if c <= 7:
                kv = ["K0","K1","V0","K2","V1","K3","V2"][ch]
                src = sK0 if kv[0] == "K" else sV0
                altL += add64(sB, src, int(kv[1])*16384)
            else:
                altL += [valu(f"v_mov_b32 v{vPat+j},0", [], V(vPat+j)) for j in range(4)]
                altL += add64(sB, sK0, 0)
            norm = add64(sB, sWQ, 256 + ch*64*8192)
            L += alt_anchor(p, f"Aalt{c}", f"s_cmp_eq_u32 s{sPass},3", S(sPass), S(sB,2)+V(vPat,4)+V(255)+["scc"], altL,
                            skip=[I(x.txt, "salu", rd=x.rd, wr=x.wr, anchor=True) for x in norm])
            item = lambda ctx, ch=ch: ("wq", ctx["pass"]+1, ch) if ctx["pass"] < 3 else [("K",0),("K",1),("V",0),("K",2),("V",1),("K",3),("V",2),("dummy",)][ch]
        else:
            altL = []
            if c == 1:
                altL += [valu(f"v_mov_b32 v{vPat+j},0", [], V(vPat+j)) for j in range(4)]
            altL += add64(sB, sWO, 0)
            norm = add64(sB, sWO, 256 + ch*64*1024)
            L += alt_anchor(p, f"Calt{c}", f"s_cmp_eq_u32 s{sPass},3", S(sPass), S(sB,2)+V(vPat,4)+["scc"], altL,
                            skip=[I(x.txt, "salu", rd=x.rd, wr=x.wr, anchor=True) for x in norm])
            item = lambda ctx, ch=ch: ("wo", ctx["pass"]+1, ch) if ctx["pass"] < 3 else ("dummy",)
        L += dma_item_static(w, ch & 7, vPat, sB, item=item)
        return L
    def bar_for(c):
        if phase == "A":
            need = lambda ctx, c=c: [("wq", ctx["pass"], c)] if c < 8 else ([("wq", ctx["pass"]+1, 0)] if ctx["pass"] < 3 else [("K",0)])
        else:
            need = lambda ctx, c=c: [("wo", ctx["pass"], c)] if c < 8 else ([("wo", ctx["pass"]+1, 0)] if ctx["pass"] < 3 else [])
        b = barrier(vm=24, needs=need)
        if phase == "A" and c <= 6:
            N0 = 66 - 6*c
            wait_alt = [I(f"s_waitcnt vmcnt({N0}) lgkmcnt(0)", "wait", lgkm=0, vm=N0, needs=lambda ctx, c=c: [("wq", 0, c), ("x", c)])]
            g = alt_anchor(p, f"P0w{c}", f"s_cmp_eq_u32 s{sPass},0", S(sPass), ["LDSF", "DSORD", "scc"], wait_alt, skip=[b[0]])
            g[1].meta["altwait"] = N0; g[1].meta["needs0"] = lambda ctx, c=c: [("wq", 0, c), ("x", c)]
            return g + [b[1]]
        return b
    for c in range(8):
        slot = c
        if c > 0: R += proj_mfmas(w, 3, 1, c-1 == 0, Bf(c-1), B13f(c-1))
        R += proj_reads(kind, slot, 1, 1)
        R += proj_mfmas(w, 0, 0, c == 0, Bf(c), B13f(c))
        R += proj_reads(kind, slot, 2, 0)
        R += proj_mfmas(w, 1, 1, c == 0, Bf(c), B13f(c))
        R += proj_reads(kind, slot, 3, 1)
        R += proj_mfmas(w, 2, 0, c == 0, Bf(c), B13f(c))
        R += bar_for(c+1)
        nslot = (c+1) & 7
        if (c+1) & 3 == 0:
            d = 4*SL if c+1 == 4 else -4*SL
            R.append(valu(f"v_add_u32 v{vAX},{d & 0xffffffff},v{vAX}", V(vAX), V(vAX)))
        R += proj_reads(kind, nslot, 0, 0)
        R += b13_reads((c+1) & 7)
        R += dma_for(c+1)
    R += proj_mfmas(w, 3, 1, False, Bf(7), B13f(7))
    return R, b13_reads, Bf

def swap_frag(r):
    return [perm32(r, r+2), perm32(r+1, r+3), perm16(r, r+2), perm16(r+1, r+3)]
def pack_pair(dst, a, b):
    return [vcvt(dst, a, a+1), vcvt(dst+1, a+2, a+3), vcvt(dst+2, b, b+1), vcvt(dst+3, b+2, b+3)]

def epiA_common(w):
    L = []
    ss = f"s{sScale}"
    for s in range(4):
        for qt in range(3):
            a, b = acc(2*s, qt), acc(2*s+1, qt)
            L += [vmul_s(a+r, ss) for r in range(4)] + [vmul_s(b+r, ss) for r in range(4)]
            L += pack_pair(a, a, b) + swap_frag(a)
    a, b = acc13(0), acc13(1)
    L += [vmul_s(a+r, ss) for r in range(4)] + [vmul_s(b+r, ss) for r in range(4)]
    L += pack_pair(a, a, b) + swap_frag(a)
    return L
def epiA_head(w, h):
    L = [ds_w128(vAL, acc13(0), OFF_Q13[h] + 1024*w)]
    for s in range(4):
        for qt in range(3):
            a = acc(2*s, qt)
            for r in range(4):
                if h < 3:
                    d = QT + 48*h + 12*s + 4*qt + r
                    L.append(valu(f"v_mov_b32 v{d},v{a+r}", V(a+r), V(d)))
                else:
                    L.append(accw(T(3, s, qt)+r, a+r))
    if h == 3:
        for hh in range(3):
            for i in range(48): L.append(accw(48*hh+i, QT+48*hh+i))
    return L

def Sreg(sset, t): return SREG + 16*sset + 4*t
def Preg(pset, qt, p): return PREG + 24*pset + 8*qt + 4*p
def Qf(qt, s): return T(0, s, qt)
def Q13f(s): return B13 + 4*s
def k_reads(kt, sg):
    return [ds_r128(pool(sg, s), vAK, kt*256 + s*64) for s in range(4)]
def v_reads(pair, sg):
    L = []
    for dtl in range(2):
        dt = 2*pair + dtl
        for p in range(2):
            for e in range(2):
                L.append(ds_tr(pool(sg, 2*dtl+p) + 2*e, vAX, (2*p+e)*256 + dt*32))
    return L
def qk_block(w, kt, sg, sset, with13, cinit=True):
    L = []
    tiles = [0, 1, 2] + ([3] if with13 else [])
    for t in tiles:
        for s in range(4):
            Bop = Qf(t, s) if t < 3 else Q13f(s)
            C = None if s else (('v', CREG + 4*t) if cinit else 0)
            L.append(mfma(('v', Sreg(sset, t)), ('a', pool(sg, s)), ('a', Bop), C))
    return L
def softmax_block(w, kt, sset, pset, with13, p13par):
    L = []
    tiles = ([3] if with13 else []) + [0, 1, 2]
    for t in tiles:
        r = Sreg(sset, t)
        L += [vexp(r+i) for i in range(4)]
        if t < 3:
            d = Preg(pset, t, kt >> 1) + 2*(kt & 1)
            L += [vcvt(d, r, r+1), vcvt(d+1, r+2, r+3)]
        else:
            L += [vcvt(r, r, r+1), vcvt(r+1, r+2, r+3)]
            L.append(ds_w64(vAL, r, OFF_P13 + 2048*p13par + 1024*(kt >> 1) + 8*(kt & 1)))
    return L
def pv_block(w, pair, sg, pset, first):
    L = []
    for dtl in range(2):
        dt = 2*pair + dtl
        for qt in range(3):
            for p in range(2):
                L.append(mfma(('v', acc(dt, qt)), ('a', pool(sg, 2*dtl+p)), ('v', Preg(pset, qt, p)), 0 if (first and p == 0) else None))
        if pair == w:
            for p in range(2):
                L.append(mfma(('v', acc13(dtl)), ('a', pool(sg, 2*dtl+p)), ('a', P13+4*p), 0 if (first and p == 0) else None))
    return L
def sum_block(pset, first):
    L = []
    for t in range(4):
        for p in range(2):
            Bop = ('v', Preg(pset, t, p)) if t < 3 else ('a', P13+4*p)
            L.append(mfma(('v', LACC+4*t), ('a', ONES), Bop, 0 if (first and p == 0) else None))
    return L
def p13_reads(par):
    return [ds_r128(P13+4*p, vAL, OFF_P13 + 2048*par + 1024*p) for p in range(2)]

def att_tail_dma(p, par, name):
    w = p.w
    sKold = sKa if ((par+1) & 1) == 0 else sKb
    sKnew = sKa if (par & 1) == 0 else sKb
    sVold = sVa if par == 0 else sVb
    sVnew = sVb if par == 0 else sVa
    L = []
    L.append(valu(f"v_add_u32 v{vAK},s{sKnew},v{vK0}", S(sKnew)+V(vK0), V(vAK)))
    L.append(valu(f"v_add_u32 v{vAX},s{sVnew},v{vV0}", S(sVnew)+V(vV0), V(vAX)))
    altK = []
    altK += [valu(f"v_subrev_u32 v255,{R1},v{vAL}", V(vAL), V(255)),
             valu(f"v_and_b32 v{vPat},0xf0,v255", V(255), V(vPat)),
             valu(f"v_lshrrev_b32 v255,8,v255", V(255), V(255)),
             valu(f"v_lshl_add_u32 v{vPat},v255,14,v{vPat}", V(255)+V(vPat), V(vPat))]
    altK += [valu(f"v_add_u32 v{vPat+j},{j*PAT_WO[1]},v{vPat}", V(vPat), V(vPat+j)) for j in range(1, 4)]
    altK += [salu(f"s_mul_hi_u32 s{sT0},s{sKold},{(1<<32)//SL+1}", S(sKold), S(sT0)),
             salu(f"s_lshl_b32 s{sT0},s{sT0},16", S(sT0), S(sT0)+["scc"])] + add64s(sB, sWO, sT0)
    L += alt_anchor(p, name+"K", f"s_cmp_ge_u32 s{sCnt},28", S(sCnt), S(sB,2)+V(vPat,4)+V(255)+S(sT0)+["scc"], altK)
    itemK = lambda ctx: ("K", ctx["nb"]+4) if ctx["nb"]+4 <= 31 else ("wo", 0, [0,1,3,5][(ctx["nb"]+4) & 3])
    L += dma_item_dyn(w, sKold, vPat, 4, sB, item=itemK)
    L += add64(sB, sB, 16384)
    altV = []
    altV += [valu(f"v_subrev_u32 v255,{R1},v{vAL}", V(vAL), V(255)),
             valu(f"v_and_b32 v{vPatV},0xf0,v255", V(255), V(vPatV)),
             valu(f"v_lshrrev_b32 v255,8,v255", V(255), V(255)),
             valu(f"v_lshl_add_u32 v{vPatV},v255,14,v{vPatV}", V(255)+V(vPatV), V(vPatV))]
    altV += [valu(f"v_add_u32 v{vPatV+j},{j*PAT_WO[1]},v{vPatV}", V(vPatV), V(vPatV+j)) for j in range(1, 4)]
    altV += [salu(f"s_mul_hi_u32 s{sT0},s{sVold},{(1<<32)//SL+1}", S(sVold), S(sT0)),
             salu(f"s_lshl_b32 s{sT0},s{sT0},16", S(sT0), S(sT0)+["scc"])] + add64s(sVB, sWO, sT0)
    L += alt_anchor(p, name+"V", f"s_cmp_ge_u32 s{sCnt},29", S(sCnt), S(sVB,2)+V(vPatV,4)+V(255)+S(sT0)+["scc"], altV)
    itemV = lambda ctx: ("V", ctx["nb"]+3) if ctx["nb"]+3 <= 31 else ("wo", 0, [2,4,6,7][(ctx["nb"]+3) & 3])
    L += dma_item_dyn(w, sVold, vPatV, 4, sVB, item=itemV)
    L += add64(sVB, sVB, 16384)
    kc = 3*SL if sKold == sKa else 6*SL
    vc = 8*SL if sVold == sVa else 11*SL
    L.append(salu(f"s_sub_u32 s{sKold},{kc},s{sKold}", S(sKold), S(sKold)+["scc"]))
    L.append(salu(f"s_sub_u32 s{sVold},{vc},s{sVold}", S(sVold), S(sVold)+["scc"]))
    L.append(salu(f"s_add_u32 s{sCnt},s{sCnt},1", S(sCnt), S(sCnt)+["scc"]))
    return L

def att_bar():
    need = lambda ctx: [x for x in (("K", ctx["nb"]+1) if ctx["nb"]+1 <= 31 else None, ("V", ctx["nb"])) if x]
    b = barrier(vm=16, needs=need)
    b[0].meta["isattbar"] = True
    return b

def att_pro(p):
    w = p.w
    R = []
    R += k_reads(0, 1)
    R += qk_block(w, 0, 1, 1, True, cinit=False)
    kt0 = w & 3
    R += k_reads(kt0, 0)
    for t in range(4):
        r = Sreg(1, t); c = CREG + 4*t
        R.append(valu(f"v_max3_f32 v{c},v{r},v{r+1},v{r+2}", V(r,3), V(c)))
        R.append(valu(f"v_max_f32 v{c},v{c},v{r+3}", V(c)+V(r+3), V(c)))
        R.append(valu(f"v_mov_b32 v{c+1},v{c}", V(c), V(c+1)))
        R.append(perm16(c, c+1))
        R.append(valu(f"v_max_f32 v{c},v{c},v{c+1}", V(c,2), V(c)))
        R.append(valu(f"v_mov_b32 v{c+1},v{c}", V(c), V(c+1)))
        R.append(perm32(c, c+1))
        R.append(valu(f"v_max_f32 v{c},v{c},v{c+1}", V(c,2), V(c)))
        R.append(valu(f"v_mul_f32 v{c},-1.0,v{c}", V(c), V(c)))
        for i in range(1, 4): R.append(valu(f"v_mov_b32 v{c+i},v{c}", V(c), V(c+i)))
    for j in range(4):
        kt = (w + j) & 3
        if j < 3: R += k_reads((w+j+1) & 3, (j+1) & 1)
        R += qk_block(w, kt, j & 1, j & 1, j == 0)
        R += softmax_block(w, kt, j & 1, 0, j == 0, 0)
    R += att_bar()
    R += att_tail_dma(p, 1, "Pro")
    R += k_reads(w & 3, 0)
    return R

def att_iter(p, par, first, name):
    w = p.w
    R = []
    R += p13_reads(par)
    for j in range(4):
        kt = (w + j) & 3
        pair = (w + 1 + j) & 3
        R += v_reads(pair, 1)
        R += qk_block(w, kt, 0, j & 1, j == 0)
        if j < 3: R += k_reads((w+j+1) & 3, 0)
        R += softmax_block(w, kt, j & 1, par ^ 1, j == 0, par ^ 1)
        if j == 3:
            R += att_bar()
            R += att_tail_dma(p, par, name)
            R += k_reads(w & 3, 0)
        R += pv_block(w, pair, 1, par, first)
    R += sum_block(par, first)
    return R

def att_last(p):
    w = p.w; par = 1
    R = []
    R += p13_reads(par)
    R += v_reads((w+1) & 3, 1)
    for j in range(4):
        pair = (w + 1 + j) & 3
        sg = (j + 1) & 1
        if j < 3: R += v_reads((w+2+j) & 3, j & 1)
        R += pv_block(w, pair, sg, par, False)
    R += sum_block(par, False)
    return R

def epiB_common(p):
    L = []
    rl = vT
    for t in range(4):
        L.append(valu(f"v_rcp_f32 v{rl+t},v{LACC+4*t}", V(LACC+4*t), V(rl+t), kind="trans"))
    for s in range(4):
        for qt in range(3):
            a, b = acc(2*s, qt), acc(2*s+1, qt)
            L += [vmul_s(a+r, f"v{rl+qt}") for r in range(4)] + [vmul_s(b+r, f"v{rl+qt}") for r in range(4)]
            L += pack_pair(a, a, b)
    a, b = acc13(0), acc13(1)
    L += [vmul_s(a+r, f"v{rl+3}") for r in range(4)] + [vmul_s(b+r, f"v{rl+3}") for r in range(4)]
    L += pack_pair(a, a, b)
    return L
def epiB_head(w, h):
    L = [ds_w128(vAL, acc13(0), OFF_Q13[h] + 1024*w)]
    dst = (h+1) & 3
    if h < 3:
        for i in range(48): L.append(accm(i, 48*dst+i))
    for s in range(4):
        for qt in range(3):
            for r in range(4): L.append(accw(T(dst, s, qt)+r, acc(2*s, qt)+r))
    return L
def q13_reads(h):
    return [ds_r128(Q13f(s), vAL, OFF_Q13[h] + 1024*s) for s in range(4)]

def epiC(w):
    L = []
    for qt in range(3):
        Tq = 3*w + qt
        L += add64(sST, sWS, Tq*4096)
        for u in range(4):
            a, b = acc(2*u, qt), acc(2*u+1, qt)
            L += pack_pair(a, a, b)
            L.append(I(f"global_store_dwordx4 v{vAL},v[{a}:{a+3}],s[{sST}:{sST+1}] offset:{u*1024}", "vmem",
                       rd=V(vAL)+V(a,4)+S(sST,2)+["VMORD"], wr=["VMORD"], store=True, item=lambda ctx: ("st",)))
    L += add64(sST, sWS, 12*4096)
    a, b = acc13(0), acc13(1)
    L += pack_pair(a, a, b)
    L.append(I(f"global_store_dwordx4 v{vAL},v[{a}:{a+3}],s[{sST}:{sST+1}] offset:{w*1024}", "vmem",
               rd=V(vAL)+V(a,4)+S(sST,2)+["VMORD"], wr=["VMORD"], store=True, item=lambda ctx: ("st",)))
    return L

def wave_program(w):
    p = Prog(w)
    P = []
    a = lambda t, rd=(), wr=(): P.append(salu(t, rd, wr))
    a(f"s_and_b32 s{sT0},s2,7", ["s2"], S(sT0)+["scc"])
    a(f"s_lshr_b32 s{sT1},s2,3", ["s2"], S(sT1)+["scc"])
    a(f"s_lshr_b32 s{sT2},s{sT1},3", S(sT1), S(sT2)+["scc"])
    a(f"s_lshl_b32 s{sT0},s{sT0},2", S(sT0), S(sT0)+["scc"])
    a(f"s_add_u32 s{sT0},s{sT0},s{sT2}", S(sT0)+S(sT2), S(sT0)+["scc"])
    a(f"s_and_b32 s{sT1},s{sT1},7", S(sT1), S(sT1)+["scc"])
    a(f"s_mul_i32 s{sT2},s{sT0},212992", S(sT0), S(sT2)); P += add64s(sX, sX, sT2)
    a(f"s_lshl_b32 s{sT2},s{sT0},22", S(sT0), S(sT2)+["scc"])
    a(f"s_lshl_b32 s{sT3},s{sT1},19", S(sT1), S(sT3)+["scc"])
    a(f"s_add_u32 s{sT2},s{sT2},s{sT3}", S(sT2)+S(sT3), S(sT2)+["scc"])
    a(f"s_add_u32 s{sT2},s{sT2},{4*w*256}", S(sT2), S(sT2)+["scc"])
    P += add64s(sK0, sK0, sT2); P += add64s(sV0, sV0, sT2)
    rowoff = 4*(w >> 1) + 8*(w & 1)
    a(f"s_lshl_b32 s{sT2},s{sT1},10", S(sT1), S(sT2)+["scc"])
    a(f"s_add_u32 s{sT2},s{sT2},{rowoff*8192}", S(sT2), S(sT2)+["scc"])
    P += add64s(sWQ, sWQ, sT2)
    a(f"s_add_u32 s{sT2},s{sT3},{4*w*1024}", S(sT3), S(sT2)+["scc"])
    P += add64s(sWO, sWO, sT2)
    a(f"s_lshl_b32 s{sT2},s{sT0},3", S(sT0), S(sT2)+["scc"])
    a(f"s_add_u32 s{sT2},s{sT2},s{sT1}", S(sT2)+S(sT1), S(sT2)+["scc"])
    a(f"s_mul_i32 s{sT2},s{sT2},212992", S(sT2), S(sT2))
    P += add64s(sWS, sWS, sT2)
    a(f"s_sub_u32 s{sWS},s{sWS},{R1}", S(sWS), S(sWS)+["scc"])
    a(f"s_subb_u32 s{sWS+1},s{sWS+1},0", S(sWS+1)+["scc"], S(sWS+1)+["scc"])
    a(f"s_mov_b32 s{sScale},{f2u(SCALE):#x}", [], S(sScale))
    a(f"s_mov_b32 s{sThr},{f2u(2.0**40):#x}", [], S(sThr))
    a(f"s_mov_b32 s{sPass},0", [], S(sPass))
    P += lane_consts(w)
    P += calc_aW(vAX, 255, 0, 1)
    P += calc_pat(vPat, 255, 0, 1, *PAT_WQ)
    P += [valu("v_and_b32 v2,15,v255", V(255), V(2)), valu("v_lshlrev_b32 v2,10,v2", V(2), V(2)),
          valu("v_lshrrev_b32 v3,4,v255", V(255), V(3)), valu("v_lshl_add_u32 v2,v3,4,v2", V(2)+V(3), V(2))]
    for i in range(4): P.append(I(f"v_accvgpr_write_b32 a{ONES+i},s{sT3}", "valu", rd=S(sT3), wr=A(ONES+i)))
    P.insert(len(P)-4, salu(f"s_mov_b32 s{sT3},0x3f803f80", [], S(sT3)))
    xb = [40, 42, 44, 46]
    for qt in range(3): P += add64(xb[qt], sX, (48*w + 16*qt)*1024)
    P += add64(xb[3], sX, 192*1024)
    def gload(dst_txt, wr, sb, off, item):
        return I(f"global_load_dwordx4 {dst_txt},v2,s[{sb}:{sb+1}] offset:{off}", "vmem", rd=V(2)+S(sb,2)+["VMORD"], wr=wr+["VMORD"], item=item)
    for i in range(4):
        P.append(gload(f"v[{8+4*i}:{11+4*i}]", V(8+4*i,4), xb[3], (4*w+i)*64, lambda ctx: ("x13",)))
    def item_wq(c):
        return add64(sB, sWQ, c*64*8192) + dma_item_static(w, c, vPat, sB, item=lambda ctx, c=c: ("wq", 0, c))
    def xload(c):
        L = []
        for pp in range(2):
            for qt in range(3):
                s = 2*c+pp
                L.append(gload(f"a[{XF(s,qt)}:{XF(s,qt)+3}]", A(XF(s,qt),4), xb[qt], s*64, lambda ctx, c=c: ("x", c)))
        return L
    for c in range(5): P += item_wq(c) + xload(c)
    P.append(I("s_waitcnt vmcnt(50)", "wait", vm=50))
    for i in range(4): P.append(ds_w128(vAL, 8+4*i, 1024*(4*w+i)))
    P.append(I("s_waitcnt vmcnt(37)", "wait", vm=37))
    P += item_wq(5) + xload(5) + item_wq(6) + xload(6) + xload(7)
    b = barrier(vm=63, needs=lambda ctx: [("wq", 0, 0), ("x", 0)])
    P += b
    bodyA, b13A, _ = pass_body(p, "A")
    P += proj_reads("W", 0, 0, 0) + b13A(0)
    P += add64(sB, sWQ, 7*64*8192) + dma_item_static(w, 7, vPat, sB, item=lambda ctx: ("wq", 0, 7))
    p.add(P)
    p.label("LA")
    p.mark = {}
    p.mark["A_body"] = (len(p.main),)
    p.add([I("LG 0", "wait", lgkm=0)])
    p.add(bodyA + epiA_common(w), sched=True)
    for h in range(4):
        if h < 3:
            p.add([salu(f"s_cmp_eq_u32 s{sPass},{h}", S(sPass), ["scc"]), I(f"s_cbranch_scc0 {p.lbl('EA%d'%(h+1))}", "branch", rd=["scc"])])
        p.add(epiA_head(w, h))
        if h < 3:
            p.add(add64(sWQ, sWQ, 256) + [salu(f"s_add_u32 s{sPass},s{sPass},1", S(sPass), S(sPass)+["scc"]),
                   I(f"s_branch {p.lbl('LA')}", "branch")])
            p.label(f"EA{h+1}")
    P = []
    P += lane_from_AL(vT)
    P += calc_aK(vK0, vT, vT+1, vT+2)
    P += calc_aV(vV0, vT, vT+1, vT+2)
    P += calc_pat(vPat, vT, vT+1, vT+2, *PAT_KV)
    P += [valu(f"v_mov_b32 v{vPatV+j},v{vPat}", V(vPat), V(vPatV+j)) for j in range(4)]
    P += [salu(f"s_mov_b32 s{sKa},0", [], S(sKa)), salu(f"s_mov_b32 s{sKb},{SL}", [], S(sKb)),
          salu(f"s_mov_b32 s{sVa},{2*SL}", [], S(sVa)), salu(f"s_mov_b32 s{sVb},{7*SL}", [], S(sVb)),
          salu(f"s_mov_b32 s{sCnt},0", [], S(sCnt)), salu(f"s_mov_b32 s{sHead},0", [], S(sHead))]
    P += add64(sB, sK0, 4*16384) + add64(sVB, sV0, 3*16384)
    P += barrier(vm=None)
    p.add(P)
    p.label("LB")
    for h in range(4):
        if h < 3:
            p.add([salu(f"s_cmp_eq_u32 s{sHead},{h}", S(sHead), ["scc"]), I(f"s_cbranch_scc0 {p.lbl('QB%d'%(h+1))}", "branch", rd=["scc"])])
        p.add(q13_reads(h))
        if h < 3:
            p.add([I(f"s_branch {p.lbl('QBX')}", "branch")]); p.label(f"QB{h+1}")
    p.label("QBX")
    p.add([I("LG 0", "wait", lgkm=0),
           valu(f"v_mov_b32 v{vAK},v{vK0}", V(vK0), V(vAK))])
    p.add(att_pro(p), sched=True)
    p.add([I("LG 0", "wait", lgkm=0)])
    p.add(att_iter(p, 0, True, "It0"), sched=True)
    p.add([salu(f"s_mov_b32 s{sPass},3", [], S(sPass))])
    p.label("LI")
    p.add([I("LG 0", "wait", lgkm=0)])
    p.add(att_iter(p, 1, False, "ItO"), sched=True)
    p.add([I("LG 0", "wait", lgkm=0)])
    p.add(att_iter(p, 0, False, "ItE"), sched=True)
    p.add([salu(f"s_sub_u32 s{sPass},s{sPass},1", S(sPass), S(sPass)+["scc"]),
           salu(f"s_cmp_lg_u32 s{sPass},0", S(sPass), ["scc"]), I(f"s_cbranch_scc1 {p.lbl('LI')}", "branch", rd=["scc"])])
    p.add([I("LG 0", "wait", lgkm=0)])
    p.add(att_last(p) + epiB_common(p), sched=True)
    for h in range(4):
        if h < 3:
            p.add([salu(f"s_cmp_eq_u32 s{sHead},{h}", S(sHead), ["scc"]), I(f"s_cbranch_scc0 {p.lbl('EB%d'%(h+1))}", "branch", rd=["scc"])])
        p.add(epiB_head(w, h))
        if h < 3:
            p.add([salu(f"s_add_u32 s{sHead},s{sHead},1", S(sHead), S(sHead)+["scc"]), I(f"s_branch {p.lbl('LB')}", "branch")])
            p.label(f"EB{h+1}")
    P = []
    P += [valu(f"v_mov_b32 v{vAX},v{vV0}", V(vV0), V(vAX)), salu(f"s_mov_b32 s{sPass},0", [], S(sPass))]
    P += barrier(vm=24, needs=lambda ctx: [("wo", 0, 0)])
    bodyC, b13C, _ = pass_body(p, "C")
    P += proj_reads("V", 0, 0, 0) + b13C(0)
    P += add64(sB, sWO, 7*64*1024) + dma_item_static(w, 7, vPat, sB, item=lambda ctx: ("wo", 0, 7))
    p.add(P)
    p.label("LC")
    p.add([I("LG 0", "wait", lgkm=0)])
    p.add(bodyC, sched=True)
    p.add(epiC(w))
    p.add(add64(sWO, sWO, 256) + add64(sWS, sWS, 53248) +
          [salu(f"s_add_u32 s{sPass},s{sPass},1", S(sPass), S(sPass)+["scc"]),
           salu(f"s_cmp_lg_u32 s{sPass},4", S(sPass), ["scc"]), I(f"s_cbranch_scc1 {p.lbl('LC')}", "branch", rd=["scc"])])
    p.add([I("s_waitcnt vmcnt(0) lgkmcnt(0)", "wait", lgkm=0, vm=0), I("s_endpgm", "end")])
    return p

HEADER = open("standalone__mha_block_cached__near_ridge.s.ref").read().split("; Override launch")[0]

def kd(name, vgpr, accum, sgpr=96):
    return f""".section .rodata,"a"
.p2align 6
.amdhsa_kernel {name}
  .amdhsa_next_free_vgpr {vgpr}
  .amdhsa_next_free_sgpr {sgpr}
  .amdhsa_accum_offset {accum}
  .amdhsa_group_segment_fixed_size 0
  .amdhsa_kernarg_size 64
  .amdhsa_user_sgpr_count 2
  .amdhsa_user_sgpr_kernarg_segment_ptr 1
  .amdhsa_system_sgpr_workgroup_id_x 1
  .amdhsa_float_denorm_mode_32 3
.end_amdhsa_kernel
"""

def reduce_kernel():
    n = "mha_reduce_kernel"
    L = []
    a = L.append
    a(f".text\n.globl {n}\n.p2align 8\n.type {n},@function\n{n}:")
    a("s_cmp_ge_u32 s2,1664"); a("s_cbranch_scc1 RED_END")
    a("s_load_dwordx2 s[4:5],s[0:1],56"); a("s_load_dwordx2 s[6:7],s[0:1],40")
    a("v_lshrrev_b32 v1,6,v0"); a("s_nop 0"); a("v_readfirstlane_b32 s8,v1")
    a("s_lshl_b32 s9,s2,2"); a("s_nop 2"); a("s_add_u32 s8,s8,s9")
    a(f"s_mul_hi_u32 s10,s8,{(1<<32)//208+1}")
    a("s_mul_i32 s11,s10,208"); a("s_sub_u32 s11,s8,s11")
    a(f"s_mul_hi_u32 s12,s11,{(1<<32)//52+1}")
    a("s_mul_i32 s13,s12,52"); a("s_sub_u32 s13,s11,s13")
    a("s_mul_i32 s14,s10,1703936"); a("s_mul_i32 s15,s12,53248"); a("s_add_u32 s14,s14,s15")
    a("s_lshl_b32 s15,s13,10"); a("s_add_u32 s14,s14,s15")
    a("v_and_b32 v2,63,v0"); a("v_lshlrev_b32 v3,4,v2")
    a("s_waitcnt lgkmcnt(0)")
    a("s_add_u32 s4,s4,s14"); a("s_addc_u32 s5,s5,0")
    for g in range(8):
        a(f"global_load_dwordx4 v[{8+4*g}:{11+4*g}],v3,s[4:5]")
        if g < 7: a("s_add_u32 s4,s4,212992"); a("s_addc_u32 s5,s5,0")
    a("s_lshr_b32 s16,s13,2"); a("s_and_b32 s17,s13,3")
    a("s_mul_i32 s18,s10,208"); a("s_lshl_b32 s16,s16,4"); a("s_add_u32 s18,s18,s16"); a("s_lshl_b32 s18,s18,10")
    a("s_lshl_b32 s19,s12,8"); a("s_add_u32 s18,s18,s19"); a("s_lshl_b32 s19,s17,6"); a("s_add_u32 s18,s18,s19")
    a("s_add_u32 s6,s6,s18"); a("s_addc_u32 s7,s7,0")
    a("v_and_b32 v4,15,v2"); a("v_lshlrev_b32 v4,10,v4"); a("v_lshrrev_b32 v5,4,v2"); a("v_lshl_add_u32 v4,v5,4,v4")
    a("s_mov_b32 s20,0xffff0000")
    for g in range(8):
        a(f"s_waitcnt vmcnt({7-g})")
        for i in range(4):
            r = 8+4*g+i
            if g == 0:
                a(f"v_lshlrev_b32 v{48+2*i},16,v{r}"); a(f"v_and_b32 v{49+2*i},s20,v{r}")
            else:
                a(f"v_lshlrev_b32 v6,16,v{r}"); a(f"v_and_b32 v7,s20,v{r}")
                a(f"v_add_f32 v{48+2*i},v{48+2*i},v6"); a(f"v_add_f32 v{49+2*i},v{49+2*i},v7")
    for i in range(4): a(f"v_cvt_pk_bf16_f32 v{56+i},v{48+2*i},v{49+2*i}")
    a("s_nop 1")
    a("v_permlane32_swap_b32 v56,v58"); a("v_permlane32_swap_b32 v57,v59"); a("s_nop 1")
    a("v_permlane16_swap_b32 v56,v58"); a("v_permlane16_swap_b32 v57,v59"); a("s_nop 1")
    a("global_store_dwordx4 v4,v[56:59],s[6:7]")
    a("RED_END:"); a("s_endpgm")
    return "\n".join(L) + "\n" + kd(n, 64, 64, 32)

def main():
    n = "mha_main_kernel"
    progs = [wave_program(w) for w in range(4)]
    out = [HEADER.rstrip("\n")]
    out.append(f"; @launch kernel={n} grid=(256,1,1) block=(256,1,1) lds={LDS_BYTES}")
    out.append(f"; @launch kernel=mha_reduce_kernel grid=(1664,1,1) block=(256,1,1) lds=0")
    out.append('.amdgcn_target "amdgcn-amd-amdhsa--gfx950"')
    out.append(MACROS)
    out.append(f".text\n.globl {n}\n.p2align 8\n.type {n},@function\n{n}:")
    E = ["s_cmp_ge_u32 s2,256", "s_cbranch_scc0 GO", "s_endpgm", "GO:",
         "s_load_dwordx4 s[4:7],s[0:1],0", "s_load_dwordx4 s[8:11],s[0:1],16", "s_load_dwordx2 s[12:13],s[0:1],32",
         "s_load_dwordx2 s[14:15],s[0:1],56",
         "v_lshrrev_b32 v1,6,v0", "s_nop 0", "v_readfirstlane_b32 s28,v1", "s_waitcnt lgkmcnt(0)"]
    for w in range(1, 4):
        E += [f"s_cmp_eq_u32 s28,{w}", f"s_cbranch_scc0 NX{w}", "s_getpc_b64 s[30:31]", f"PC{w}:",
              f"s_add_u32 s30,s30,W{w}-PC{w}", "s_addc_u32 s31,s31,0", "s_setpc_b64 s[30:31]", f"NX{w}:"]
    out += E
    for w, p in enumerate(progs):
        out.append(".p2align 6"); out.append(f"W{w}:")
        out += [i.txt for i in p.main]
        out += [i.txt for i in p.ool]
    out.append(kd(n, 512, 256))
    out.append(reduce_kernel())
    txt = "\n".join(out) + "\n"
    return txt, progs

if __name__ == "__main__":
    txt, progs = main()
    dst = sys.argv[1] if len(sys.argv) > 1 else "standalone__mha_block_cached__near_ridge.s"
    open(dst, "w").write(txt)
    print("bytes", len(txt), "instrs/wave", [len(p.main)+len(p.ool) for p in progs])
```

```python
import re, sys
sys.path.insert(0, "gen")
from asmlib import *

def dyn_trace(p):
    code = p.main + p.ool
    labels = {}
    for i, ins in enumerate(code):
        if ins.kind == "label": labels[ins.txt[:-1]] = i
    s = {}; scc = 0; pc = 0; out = []
    def val(x):
        x = x.strip()
        if re.fullmatch(r"s\d+", x): return s.get(int(x[1:]))
        try: return int(x, 0)
        except: return None
    n = 0
    while True:
        ins = code[pc]; n += 1
        assert n < 2000000
        out.append((ins, {"pass": s.get(20), "cnt": s.get(21), "head": s.get(34)}))
        t = ins.txt
        m = re.match(r"(s_\w+)\s*(.*)", t)
        nxt = pc + 1
        if m:
            op, args = m.group(1), [a.strip() for a in m.group(2).split(",")] if m.group(2) else []
            if op == "s_endpgm": break
            if op == "s_mov_b32" and re.fullmatch(r"s\d+", args[0]): s[int(args[0][1:])] = val(args[1])
            elif op in ("s_add_u32", "s_sub_u32") and re.fullmatch(r"s\d+", args[0]):
                a, b = val(args[1]), val(args[2])
                s[int(args[0][1:])] = None if a is None or b is None else (a+b if op == "s_add_u32" else a-b) & 0xffffffff
            elif op.startswith("s_cmp_"):
                a, b = val(args[0]), val(args[1])
                assert a is not None and b is not None, t
                scc = {"eq": a == b, "lg": a != b, "ge": a >= b, "lt": a < b}[op.split("_")[2]]
            elif op == "s_cbranch_scc1":
                if scc: nxt = labels[args[0]]
            elif op == "s_cbranch_scc0":
                if not scc: nxt = labels[args[0]]
            elif op == "s_branch": nxt = labels[args[0]]
            elif op == "s_cbranch_vccnz": pass
            elif re.fullmatch(r"s\d+", args[0] if args else "") and op not in ("s_waitcnt","s_nop","s_barrier"):
                if int(args[0][1:]) in (20, 21, 34): s[int(args[0][1:])] = None
        pc = nxt
    return out

def check(p, verbose=True):
    tr = dyn_trace(p)
    issued = []; nb = None; bad = 0; slack = {}
    for ins, c in tr:
        ctx = dict(c)
        if ins.meta.get("isattbar"): nb = c["cnt"]
        ctx["nb"] = nb
        if ins.kind in ("dma", "vmem"):
            issued.append(ins.meta["item"](ctx))
        if ins.kind == "wait" and ins.meta.get("vm") is not None and ins.meta.get("needs"):
            N = ins.meta["vm"]
            for it in ins.meta["needs"](ctx):
                idx = max((i for i, x in enumerate(issued) if x == it), default=None)
                if idx is None: print("NEVER ISSUED", it, ctx); bad += 1; continue
                younger = len(issued) - 1 - idx
                if younger < N: print("VMCNT VIOLATION", ins.txt, it, "younger", younger, ctx); bad += 1
                slack.setdefault(ins.txt, []).append(younger - N)
    from collections import Counter
    cnt = Counter(issued)
    exp = {}
    dups = {k: v for k, v in cnt.items() if k[0] in ("wq", "wo", "K", "V") and v != 4}
    if dups: print("piece count anomalies:", dups); bad += 1
    nK = sum(1 for k in cnt if k[0] == "K"); nV = sum(1 for k in cnt if k[0] == "V")
    seq = [i for i, _ in tr]
    _, _, viol = fix_hazards(seq, [], check_only=True)
    for P, C, n in viol[:10]: print("HAZARD", P.txt, "->", C.txt, "short", n)
    bad += len(viol)
    pend = []
    for ins in seq:
        if ins.kind == "wait" and ins.meta.get("lgkm") is not None:
            k = ins.meta["lgkm"]; pend = pend[len(pend)-k:] if k else []; continue
        touch = set(r for r in ins.rd + ins.wr if r[0] in "va" and r[1:].isdigit())
        if any(d & touch for d in pend): print("LGKM VIOLATION", ins.txt); bad += 1; pend = []
        if ins.kind == "dsr": pend.append(set(r for r in ins.wr if r != "DSORD"))
        elif ins.kind == "dsw": pend.append(set())
        if len(pend) > 15: print("lgkm overflow"); bad += 1
    nm = sum(1 for i in seq if i.kind == "mfma")
    kinds = Counter(i.kind for i in seq)
    nops = sum(i.meta["n"] for i in seq if i.kind == "nop")
    if verbose: print(f"wave {p.w}: dyn instrs {len(seq)} mfma {nm} K{nK} V{nV} kinds {dict(kinds)} nopstates {nops} bad {bad}")
    return bad

if __name__ == "__main__":
    import gen
    txt, progs = gen.main()
    tot = sum(check(p) for p in progs)
    print("TOTAL BAD", tot)
```

```python
import re

def V(i, n=1): return [f"v{k}" for k in range(i, i+n)]
def A(i, n=1): return [f"a{k}" for k in range(i, i+n)]
def S(i, n=1): return [f"s{k}" for k in range(i, i+n)]
def rr(c, i, n):
    return f"{c}{i}" if n == 1 else f"{c}[{i}:{i+n-1}]"

class I:
    __slots__ = ("txt", "kind", "rd", "wr", "cost", "meta", "after_gap", "srcc", "dreg")
    def __init__(self, txt, kind, rd=(), wr=(), cost=None, **meta):
        self.txt = txt; self.kind = kind
        self.rd = list(rd); self.wr = list(wr)
        self.cost = cost if cost is not None else {"valu":4,"trans":8,"perm":4,"dsr":4,"dsw":4,"dma":4,"vmem":4,"salu":1,"mfma":8}.get(kind, 1)
        self.meta = meta
        self.srcc = meta.get("srcc", [])
        self.dreg = meta.get("dreg", None)
    def __repr__(self): return self.txt

def reg(cls, i, n): return (cls, i, n)
def regs(r): return [f"{r[0]}{k}" for k in range(r[1], r[1]+r[2])]
def rtxt(r): return rr(r[0], r[1], r[2])

def mfma(D, Aop, Bop, C):
    d = (D[0], D[1], 4); a = (Aop[0], Aop[1], 4); b = (Bop[0], Bop[1], 4)
    if C is None: c = d; ctxt = rtxt(d); crd = regs(d)
    elif C == 0: ctxt = "0"; crd = []
    else: c = (C[0], C[1], 4); ctxt = rtxt(c); crd = regs(c)
    key = (D[0], Aop[0], Bop[0])
    if D[0] == 'v' and Aop[0] == 'a':
        if C is None: txt = f"M{Bop[0]} {D[1]},{Aop[1]},{Bop[1]}"
        elif C == 0:  txt = f"Z{Bop[0]} {D[1]},{Aop[1]},{Bop[1]}"
        elif C[0] == 'v': txt = f"C{Bop[0]} {D[1]},{Aop[1]},{Bop[1]},{C[1]}"
        else: raise ValueError
    else:
        txt = f"v_mfma_f32_16x16x32_bf16 {rtxt(d)},{rtxt(a)},{rtxt(b)},{ctxt}"
    return I(txt, "mfma", rd=regs(a)+regs(b)+crd, wr=regs(d), srcc=crd, dreg=(d, C is None), ab=regs(a)+regs(b))

MACROS = r"""
.macro Ma d,a,b
v_mfma_f32_16x16x32_bf16 v[\d:\d+3],a[\a:\a+3],a[\b:\b+3],v[\d:\d+3]
.endm
.macro Mv d,a,b
v_mfma_f32_16x16x32_bf16 v[\d:\d+3],a[\a:\a+3],v[\b:\b+3],v[\d:\d+3]
.endm
.macro Za d,a,b
v_mfma_f32_16x16x32_bf16 v[\d:\d+3],a[\a:\a+3],a[\b:\b+3],0
.endm
.macro Zv d,a,b
v_mfma_f32_16x16x32_bf16 v[\d:\d+3],a[\a:\a+3],v[\b:\b+3],0
.endm
.macro Ca d,a,b,c
v_mfma_f32_16x16x32_bf16 v[\d:\d+3],a[\a:\a+3],a[\b:\b+3],v[\c:\c+3]
.endm
.macro Cv d,a,b,c
v_mfma_f32_16x16x32_bf16 v[\d:\d+3],a[\a:\a+3],v[\b:\b+3],v[\c:\c+3]
.endm
.macro TR d,r,o
ds_read_b64_tr_b16 a[\d:\d+1],v\r offset:\o
.endm
.macro RD d,r,o
ds_read_b128 a[\d:\d+3],v\r offset:\o
.endm
.macro EX d
v_exp_f32 v\d,v\d
.endm
.macro CV d,a,b
v_cvt_pk_bf16_f32 v\d,v\a,v\b
.endm
.macro DM p,s,o
global_load_lds_dwordx4 v\p,s[\s:\s+1] offset:\o nt
.endm
.macro AW d,s
v_accvgpr_write_b32 a\d,v\s
.endm
.macro AM d,s
v_accvgpr_mov_b32 a\d,a\s
.endm
.macro MU d,s
v_mul_f32 v\d,\s,v\d
.endm
.macro LG n
s_waitcnt lgkmcnt(\n)
.endm
"""

def ds_tr(da, vaddr, off, fence="LDSF"):
    assert 0 <= off < 65536, off
    return I(f"TR {da},{vaddr},{off}", "dsr", rd=[f"v{vaddr}", fence, "DSORD"], wr=A(da,2)+["DSORD"])
def ds_r128(da, vaddr, off, fence="LDSF"):
    assert 0 <= off < 65536, off
    return I(f"RD {da},{vaddr},{off}", "dsr", rd=[f"v{vaddr}", fence, "DSORD"], wr=A(da,4)+["DSORD"])
def ds_r128v(dv, vaddr, off, fence="LDSF"):
    assert 0 <= off < 65536, off
    return I(f"ds_read_b128 v[{dv}:{dv+3}],v{vaddr} offset:{off}", "dsr", rd=[f"v{vaddr}", fence, "DSORD"], wr=V(dv,4)+["DSORD"])
def ds_w128(vaddr, sv, off, fence="LDSF"):
    assert 0 <= off < 65536, off
    return I(f"ds_write_b128 v{vaddr},v[{sv}:{sv+3}] offset:{off}", "dsw", rd=[f"v{vaddr}", fence, "DSORD"]+V(sv,4), wr=["DSORD"])
def ds_w64(vaddr, sv, off, fence="LDSF"):
    assert 0 <= off < 65536, off
    return I(f"ds_write_b64 v{vaddr},v[{sv}:{sv+1}] offset:{off}", "dsw", rd=[f"v{vaddr}", fence, "DSORD"]+V(sv,2), wr=["DSORD"])
def dma(vpat, sbase, off, item=None):
    return I(f"DM {vpat},{sbase},{off}", "dma", rd=[f"v{vpat}", "m0", "LDSF", "VMORD"]+S(sbase,2), wr=["VMORD"], item=item)
def dma_next(vpat, sbase, off, m0next, item=None):
    i = dma(vpat, sbase, off, item)
    if m0next:
        i.txt += "\n" + m0next; i.wr = i.wr + ["m0"]; i.meta["fused_m0"] = True
    return i
def vexp(d): return I(f"EX {d}", "trans", rd=V(d), wr=V(d))
def vcvt(d, a, b): return I(f"CV {d},{a},{b}", "valu", rd=V(a)+V(b), wr=V(d))
def valu(txt, rd, wr, kind="valu"): return I(txt, kind, rd=rd, wr=wr)
def salu(txt, rd, wr): return I(txt, "salu", rd=rd, wr=wr)
def accw(da, sv): return I(f"AW {da},{sv}", "valu", rd=V(sv), wr=A(da))
def accm(da, sa): return I(f"AM {da},{sa}", "valu", rd=A(sa), wr=A(da))
def vmul_s(d, s): return I(f"MU {d},{s}", "valu", rd=V(d)+([s] if s.startswith('s') or s.startswith('v') else []), wr=V(d))
def perm32(a, b): return I(f"v_permlane32_swap_b32 v{a},v{b}", "perm", rd=V(a)+V(b), wr=V(a)+V(b))
def perm16(a, b): return I(f"v_permlane16_swap_b32 v{a},v{b}", "perm", rd=V(a)+V(b), wr=V(a)+V(b))
def barrier(vm=None, needs=None):
    w = "s_waitcnt " + (f"vmcnt({vm}) " if vm is not None else "") + "lgkmcnt(0)"
    return [I(w, "wait", rd=[], wr=["LDSF", "DSORD"], anchor=True, vm=vm, lgkm=0, needs=needs),
            I("s_barrier", "bar", rd=[], wr=["LDSF"], anchor=True)]
def raw(txt, kind="salu", rd=(), wr=(), **meta): return I(txt, kind, rd=rd, wr=wr, **meta)

def is_anchor(ins): return ins.kind == "mfma" or ins.meta.get("anchor", False)

def schedule(region, gapbudget=8, lat_ds=7, mfma_to_valu=4, maxsalu=2, window=6):
    n = len(region)
    preds = [set() for _ in range(n)]; succs = [set() for _ in range(n)]
    rawm = [set() for _ in range(n)]
    last_w = {}; readers = {}
    for i, ins in enumerate(region):
        for r in ins.rd:
            if r in last_w:
                preds[i].add(last_w[r])
                if region[last_w[r]].kind == "mfma" and ins.kind != "mfma": rawm[i].add(last_w[r])
        for r in ins.wr:
            if r in last_w:
                preds[i].add(last_w[r])
                if region[last_w[r]].kind == "mfma" and ins.kind != "mfma": rawm[i].add(last_w[r])
            for j in readers.get(r, ()):
                if j != i: preds[i].add(j)
        for r in ins.rd: readers.setdefault(r, []).append(i)
        for r in ins.wr: last_w[r] = i; readers[r] = []
    for i in range(n):
        preds[i].discard(i)
        for p in preds[i]: succs[p].add(i)
    anchors = [i for i in range(n) if is_anchor(region[i])]
    apos = {}; k = 0
    for i in anchors:
        apos[i] = k
        if region[i].kind == "mfma": k += 1
    nm = k
    dl = [None]*n
    for i in range(n-1, -1, -1):
        if i in apos: dl[i] = apos[i]; continue
        d = nm + 1000
        for s in succs[i]:
            ki, ks = region[i].kind, region[s].kind
            lat = 0
            if ki == "dsr" and any(r in region[s].rd for r in region[i].wr if r != "DSORD"): lat = lat_ds
            elif ki in ("trans","valu","perm") and ks == "mfma": lat = 1
            elif ki == "trans": lat = 1
            elif ki in ("valu","perm") and ks == "perm": lat = 1
            d = min(d, dl[s] - lat)
        if region[i].meta.get("need_end"): d = min(d, nm - lat_ds)
        dl[i] = d + region[i].meta.get("dl_bias", 0)
    emitted = [False]*n; out = []; gap_of = [None]*n
    npend = [len(preds[i]) for i in range(n)]
    ready = set(i for i in range(n) if npend[i] == 0 and i not in apos)
    cur_gap = [0]
    def emit(i):
        emitted[i] = True; gap_of[i] = cur_gap[0]; out.append(region[i])
        ready.discard(i)
        for s in succs[i]:
            npend[s] -= 1
            if npend[s] == 0 and s not in apos: ready.add(s)
    def force(i):
        stack = sorted(p for p in preds[i] if not emitted[p])
        for p in stack:
            if emitted[p]: continue
            assert p not in apos, f"anchor pred not emitted: {region[p]} before {region[i]}"
            force(p); emit(p)
    def earliest_ok(i):
        for p in rawm[i]:
            if cur_gap[0] < apos[p] + mfma_to_valu: return False
        if region[i].kind == "dsr" and cur_gap[0] < dl[i] - window: return False
        if region[i].kind == "dma":
            for p in preds[i]:
                if "m0" in region[p].wr and gap_of[p] == cur_gap[0] and region[p].kind == "salu": return False
        mg = region[i].meta.get("min_gap")
        if mg is not None and cur_gap[0] < mg: return False
        return True
    for a in anchors:
        force(a); emit(a)
        if region[a].kind != "mfma": continue
        cur_gap[0] = apos[a] + 1
        budget = gapbudget; nsalu = 0; nvm = 0; had_trans = False
        while True:
            cands = [i for i in ready if earliest_ok(i)]
            cands.sort(key=lambda i: (dl[i], i))
            pick = None
            for i in cands:
                ins = region[i]
                if ins.kind == "salu":
                    if nsalu < maxsalu: pick = i; break
                    continue
                if ins.kind in ("dma", "vmem") and nvm >= 1: continue
                if had_trans: continue
                if ins.cost <= budget: pick = i; break
            if pick is None: break
            ins = region[pick]
            if ins.kind == "salu": nsalu += 1
            else:
                budget -= ins.cost
                if ins.kind == "trans": had_trans = True
                if ins.kind in ("dma", "vmem"): nvm += 1
            emit(pick)
    for i in range(n):
        if not emitted[i]:
            force(i); emit(i)
    return out

def insert_lgkm(seq, pend=None):
    out = []; pend = [] if pend is None else pend
    for ins in seq:
        if ins.kind == "wait" and ins.meta.get("lgkm") is not None:
            k = ins.meta["lgkm"]; pend = pend[len(pend)-k:] if k else []
            out.append(ins); continue
        touch = set(r for r in ins.rd + ins.wr if r[0] in "va" and r[1:].isdigit())
        need = -1
        for j, d in enumerate(pend):
            if d & touch: need = j
        if need >= 0:
            nleft = len(pend) - need - 1
            out.append(I(f"LG {nleft}", "wait", lgkm=nleft, auto=True))
            pend = pend[need+1:]
        if ins.kind == "dsr":
            pend.append(set(r for r in ins.wr if r != "DSORD"))
        elif ins.kind == "dsw":
            pend.append(set())
        assert len(pend) <= 15, "lgkmcnt overflow"
        out.append(ins)
    return out, pend

def is_valu(k): return k in ("valu", "trans", "perm")
def need_states(P, C):
    pw = set(P.wr); pr = set(P.rd); cr = set(C.rd); cw = set(C.wr)
    reg = lambda s: set(r for r in s if r[0] in "va" and r[1:].isdigit())
    n = 0
    if is_valu(P.kind):
        if C.kind == "mfma" and reg(pw) & reg(cr): n = max(n, 2)
        if C.kind == "perm" and reg(pw) & reg(cr): n = max(n, 2)
        if P.kind == "trans" and C.kind in ("valu", "perm") and reg(pw) & reg(cr): n = max(n, 1)
        sw = set(r for r in pw if (r[0] == "s" and r[1:].isdigit()) or r == "vcc")
        if sw:
            if is_valu(C.kind) and sw & cr: n = max(n, 2)
            if C.kind in ("dma", "vmem") and sw & cr: n = max(n, 5)
            if C.kind in ("salu", "branch") and sw & cr: n = max(n, 1)
        if C.meta.get("readlane") and reg(pw) & reg(cr): n = max(n, 1)
    if P.kind == "mfma":
        D = reg(pw)
        if C.kind == "mfma":
            if D & set(C.meta["ab"]): n = max(n, 8)
            if D & set(C.srcc):
                same = C.dreg[1] and C.dreg[0] == P.dreg[0]
                if not same: n = max(n, 6)
            elif D & reg(cw):
                n = max(n, 6)
        elif is_valu(C.kind) or C.kind in ("dsr", "dsw", "vmem", "dma"):
            if D & (reg(cr) | reg(cw)): n = max(n, 8)
        if is_valu(C.kind) and set(P.srcc) & reg(cw): n = max(n, 3)
    if "m0" in pw and C.kind == "dma": n = max(n, 1)
    if P.kind == "vmem" and P.meta.get("store") and is_valu(C.kind) and reg(pr) & reg(cw): n = max(n, 2)
    return n
def states_of(ins):
    if ins.kind == "nop": return ins.meta["n"]
    if ins.kind == "label": return 0
    return 1 + ins.txt.count("\n") if not ins.meta.get("fused_m0") else 1
def fix_hazards(seq, hist=None, check_only=False):
    hist = [] if hist is None else list(hist)
    out = []; viol = []
    for ins in seq:
        if ins.kind != "label":
            dist = 0; need = 0
            for P in reversed(hist):
                r = need_states(P, ins)
                if r - dist > need: need = r - dist; culprit = P
                dist += states_of(P)
                if dist >= 10: break
            if need > 0:
                if check_only: viol.append((culprit, ins, need))
                else:
                    nop = I(f"s_nop {need-1}", "nop", n=need)
                    out.append(nop); hist.append(nop)
        out.append(ins); hist.append(ins)
        if len(hist) > 24: hist = hist[-24:]
    return out, hist, viol
```

```python
import sys, math, struct
sys.path.insert(0, "gen")
from asmlib import *

SL = 16896
PC = 1056
R1 = 8*SL
OFF_Q13 = [16384, 16384+4096, 16384+8192, 0]
OFF_P13 = 4096
LDS_BYTES = 163840
NAME = "standalone__mha_block_cached__near_ridge"

sX, sK0, sV0, sWQ, sWO, sWS, sB, sVB = 4, 6, 8, 10, 12, 14, 16, 18
sPass, sCnt, sKa, sKb, sVa, sVb, sScale, sThr = 20, 21, 22, 23, 24, 25, 26, 27
sT0, sT1, sT2, sT3 = 28, 29, 30, 31
sST = 32
sHead = 34
sDbg = 36
ACC = 0
def acc(dt, qt): return ACC + 12*dt + 4*qt
def acc13(e): return ACC + 96 + 4*e
QT = 104
LACC = 104
SREG = 120
PREG = 152
CREG = 200
vPatV = 216
vK0, vV0 = 220, 221
vT = 224
vAX, vAL, vPat, vAK, vTmp = 248, 249, 250, 254, 255
def T(k, s, qt): return 48*k + 12*s + 4*qt
def XF(s, qt): return 12*s + 4*qt
POOL = 192
def pool(sg, i): return POOL + 16*sg + 4*i
B13 = 224
ONES = 240
P13 = 244

import os
PROFILE = bool(os.environ.get("PROFILE"))
SCALE = math.log2(math.e) / math.sqrt(128.0)
def f2u(x): return struct.unpack("<I", struct.pack("<f", x))[0]

class Prog:
    def __init__(self, w):
        self.w = w; self.main = []; self.ool = []; self.hist = []; self.pend = []
    def lbl(self, name): return f"{name}_w{self.w}"
    def stamp(self):
        if not PROFILE: return
        self.add([I("s_memtime s[60:61]", "salu", wr=S(60,2)), I("s_waitcnt lgkmcnt(0)", "wait", lgkm=0),
                  valu("v_accvgpr_read_b32 v255,a252", A(252), V(255)), salu("s_mov_b32 m0,s62", S(62), ["m0"]), I("s_nop 1", "nop", n=2),
                  valu("v_writelane_b32 v255,s60,m0", V(255)+S(60), V(255)), I("s_nop 1", "nop", n=2),
                  valu("v_accvgpr_write_b32 a252,v255", V(255), A(252)),
                  salu("s_add_u32 s62,s62,1", S(62), S(62))])
    def stamp_flush(self):
        if not PROFILE: return
        w = self.w
        self.add([salu("s_lshl_b32 s60,s2,10", ["s2"], S(60)), salu(f"s_add_u32 s60,s60,{(64<<20) + w*256}", S(60), S(60)),
                  salu("s_load_dwordx2 s[62:63],s[0:1],56", [], S(62,2)), I("s_waitcnt lgkmcnt(0)", "wait", lgkm=0),
                  salu("s_add_u32 s62,s62,s60", S(62)+S(60), S(62)), salu("s_addc_u32 s63,s63,0", S(63), S(63)),
                  valu("v_accvgpr_read_b32 v255,a252", A(252), V(255)),
                  valu(f"v_subrev_u32 v254,{R1},v{vAL}", V(vAL), V(254)), valu("v_lshrrev_b32 v254,2,v254", V(254), V(254)),
                  I("global_store_dword v254,v255,s[62:63]", "vmem", rd=V(254)+V(255)+S(62,2), item=lambda ctx: ("st",))])
    def add(self, seq, sched=False, **kw):
        if sched: seq = schedule(seq, **kw)
        seq, self.pend = insert_lgkm(seq, self.pend)
        seq, self.hist, _ = fix_hazards(seq, self.hist)
        self.main += seq
    def label(self, name):
        self.main.append(I(f"{self.lbl(name)}:", "label"))
    def add_ool(self, name, seq, back):
        s = [I(f"{self.lbl(name)}:", "label")] + [I("s_nop 1", "nop", n=2)] + list(seq)
        s, _, _ = fix_hazards(s, [])
        s += [I("s_nop 1", "nop", n=2), I(f"s_branch {self.lbl(back)}", "branch")]
        self.ool += s

def alt_anchor(p, name, cmp_txt, rd, wr, seq, skip=()):
    back = name + "_r"
    p.add_ool(name, seq, back)
    g = [I(cmp_txt + f"\ns_cbranch_scc1 {p.lbl(name)}", "branch", rd=list(rd), wr=list(wr), anchor=True)]
    g += list(skip)
    g += [I(f"{p.lbl(back)}:", "label", anchor=True, wr=list(wr))]
    return g

def lane_consts(w):
    L = []
    L.append(valu("v_and_b32 v255,63,v0", V(0), V(255)))
    L.append(valu(f"v_lshlrev_b32 v{vAL},4,v255", V(255), V(vAL)))
    L.append(valu(f"v_add_u32 v{vAL},{R1},v{vAL}", V(vAL), V(vAL)))
    return L
def lane_from_AL(dst):
    return [valu(f"v_subrev_u32 v{dst},{R1},v{vAL}", V(vAL), V(dst)),
            valu(f"v_lshrrev_b32 v{dst},4,v{dst}", V(dst), V(dst))]
def calc_aW(dst, lane, t0, t1):
    return [valu(f"v_bfe_u32 v{t0},v{lane},2,3", V(lane), V(t0)),
            valu(f"v_mul_u32_u24 v{dst},{PC},v{t0}", V(t0), V(dst)),
            valu(f"v_lshrrev_b32 v{t0},5,v{lane}", V(lane), V(t0)),
            valu(f"v_lshlrev_b32 v{t0},8,v{t0}", V(t0), V(t0)),
            valu(f"v_and_b32 v{t1},3,v{lane}", V(lane), V(t1)),
            valu(f"v_lshlrev_b32 v{t1},3,v{t1}", V(t1), V(t1)),
            valu(f"v_add3_u32 v{dst},v{dst},v{t0},v{t1}", V(dst)+V(t0)+V(t1), V(dst))]
def calc_aV(dst, lane, t0, t1):
    return [valu(f"v_lshrrev_b32 v{t0},2,v{lane}", V(lane), V(t0)),
            valu(f"v_mul_u32_u24 v{dst},{PC},v{t0}", V(t0), V(dst)),
            valu(f"v_and_b32 v{t1},3,v{lane}", V(lane), V(t1)),
            valu(f"v_lshl_add_u32 v{dst},v{t1},3,v{dst}", V(t1)+V(dst), V(dst))]
def calc_aK(dst, lane, t0, t1):
    return [valu(f"v_and_b32 v{t0},15,v{lane}", V(lane), V(t0)),
            valu(f"v_mul_u32_u24 v{dst},{PC},v{t0}", V(t0), V(dst)),
            valu(f"v_lshrrev_b32 v{t1},4,v{lane}", V(lane), V(t1)),
            valu(f"v_lshl_add_u32 v{dst},v{t1},4,v{dst}", V(t1)+V(dst), V(dst))]
def calc_pat(dst4, lane, t0, t1, tshift, jstep):
    L = [valu(f"v_lshrrev_b32 v{t0},4,v{lane}", V(lane), V(t0)),
         valu(f"v_lshlrev_b32 v{t0},{tshift},v{t0}", V(t0), V(t0)),
         valu(f"v_and_b32 v{t1},15,v{lane}", V(lane), V(t1)),
         valu(f"v_lshl_add_u32 v{dst4},v{t1},4,v{t0}", V(t0)+V(t1), V(dst4))]
    for j in range(1, 4):
        L.append(valu(f"v_add_u32 v{dst4+j},{j*jstep},v{dst4}", V(dst4), V(dst4+j)))
    return L
PAT_WQ = (17, 8192-256); PAT_KV = (12, 0); PAT_WO = (14, 1024-256)

def add64(dst, src, lit):
    return [salu(f"s_add_u32 s{dst},s{src},{lit}\ns_addc_u32 s{dst+1},s{src+1},0", S(src,2), S(dst,2))]
def add64s(dst, src, sreg):
    return [salu(f"s_add_u32 s{dst},s{src},s{sreg}\ns_addc_u32 s{dst+1},s{src+1},0", S(src,2)+S(sreg), S(dst,2))]

def dma_item_static(w, slot, vpat, sbase, item=None):
    m0 = lambda j: slot*SL + (4*w + j)*PC - 256*j
    L = [salu(f"s_mov_b32 m0,{m0(0)}", [], ["m0"])]
    for j in range(4):
        L.append(dma_next(vpat+j, sbase, 256*j, f"s_mov_b32 m0,{m0(j+1)}" if j < 3 else None, item=item))
    return L
def dma_item_dyn(w, sslot, vpat0, npat, sbase, item=None):
    L = [salu(f"s_add_u32 m0,s{sslot},{4*w*PC}", S(sslot), ["m0"])]
    for j in range(4):
        L.append(dma_next(vpat0 + (j if npat == 4 else 0), sbase, 256*j, f"s_add_u32 m0,m0,{PC-256}" if j < 3 else None, item=item))
    return L

def proj_reads(kind, slot, blk, sg):
    L = []
    base = (slot & 3)*SL
    for dtl in range(2):
        dt = 2*blk + dtl
        for p in range(2):
            for e in range(2):
                if kind == "W": off = base + e*8*PC + p*512 + dt*32
                else:           off = base + (2*p+e)*256 + dt*32
                L.append(ds_tr(pool(sg, 2*dtl+p) + 2*e, vAX, off))
    return L
def proj_mfmas(w, blk, sg, first, Bf, B13f):
    L = []
    for dtl in range(2):
        dt = 2*blk + dtl
        for qt in range(3):
            for p in range(2):
                L.append(mfma(('v', acc(dt, qt)), ('a', pool(sg, 2*dtl+p)), ('a', Bf(qt, p)), 0 if (first and p == 0) else None))
        if blk == w:
            for p in range(2):
                L.append(mfma(('v', acc13(dtl)), ('a', pool(sg, 2*dtl+p)), ('a', B13f(p)), 0 if (first and p == 0) else None))
    return L

def pass_body(p, phase):
    w = p.w
    kind = "W" if phase == "A" else "V"
    R = []
    def Bf(c):
        if phase == "A": return lambda qt, pp: XF(2*c+pp, qt)
        hh = c >> 1
        return lambda qt, pp: T((hh+1) & 3, 2*(c & 1)+pp, qt)
    def b13_reads(c):
        L = []
        for pp in range(2):
            if phase == "A": off = 1024*(2*c+pp)
            else: off = OFF_Q13[c >> 1] + 1024*(2*(c & 1)+pp)
            L.append(ds_r128(B13 + 8*(c & 1) + 4*pp, vAL, off))
        return L
    B13f = lambda c: (lambda pp: B13 + 8*(c & 1) + 4*pp)
    def dma_for(c):
        ch = c - 1
        L = []
        if phase == "A":
            altL = []
            if c == 1:
                altL += [valu(f"v_subrev_u32 v255,{R1},v{vAL}", V(vAL), V(255)),
                         valu(f"v_and_b32 v{vPat},0xf0,v255", V(255), V(vPat)),
                         valu(f"v_lshrrev_b32 v255,8,v255", V(255), V(255)),
                         valu(f"v_lshl_add_u32 v{vPat},v255,12,v{vPat}", V(255)+V(vPat), V(vPat))]
                altL += [valu(f"v_mov_b32 v{vPat+j},v{vPat}", V(vPat), V(vPat+j)) for j in range(1, 4)]
            if c <= 7:
                kv = ["K0","K1","V0","K2","V1","K3","V2"][ch]
                src = sK0 if kv[0] == "K" else sV0
                altL += add64(sB, src, int(kv[1])*16384)
            else:
                altL += [valu(f"v_mov_b32 v{vPat+j},0", [], V(vPat+j)) for j in range(4)]
                altL += add64(sB, sK0, 0)
            norm = add64(sB, sWQ, 256 + ch*64*8192)
            L += alt_anchor(p, f"Aalt{c}", f"s_cmp_eq_u32 s{sPass},3", S(sPass), S(sB,2)+V(vPat,4)+V(255), altL,
                            skip=[I(x.txt, "salu", rd=x.rd, wr=x.wr, anchor=True) for x in norm])
            item = lambda ctx, ch=ch: ("wq", ctx["pass"]+1, ch) if ctx["pass"] < 3 else [("K",0),("K",1),("V",0),("K",2),("V",1),("K",3),("V",2),("dummy",)][ch]
        else:
            altL = []
            if c == 1:
                altL += [valu(f"v_mov_b32 v{vPat+j},0", [], V(vPat+j)) for j in range(4)]
            altL += add64(sB, sWO, 0)
            norm = add64(sB, sWO, 256 + ch*64*1024)
            L += alt_anchor(p, f"Calt{c}", f"s_cmp_eq_u32 s{sPass},3", S(sPass), S(sB,2)+V(vPat,4), altL,
                            skip=[I(x.txt, "salu", rd=x.rd, wr=x.wr, anchor=True) for x in norm])
            item = lambda ctx, ch=ch: ("wo", ctx["pass"]+1, ch) if ctx["pass"] < 3 else ("dummy",)
        L += dma_item_static(w, ch & 7, vPat, sB, item=item)
        return L
    def bar_for(c):
        if phase == "A":
            need = lambda ctx, c=c: [("wq", ctx["pass"], c)] if c < 8 else ([("wq", ctx["pass"]+1, 0)] if ctx["pass"] < 3 else [("K",0)])
        else:
            need = lambda ctx, c=c: [("wo", ctx["pass"], c)] if c < 8 else ([("wo", ctx["pass"]+1, 0)] if ctx["pass"] < 3 else [])
        b = barrier(vm=24, needs=need)
        if phase == "A" and c <= 6:
            N0 = 66 - 6*c
            wait_alt = [I(f"s_waitcnt vmcnt({N0}) lgkmcnt(0)", "wait", lgkm=0, vm=N0, needs=lambda ctx, c=c: [("wq", 0, c), ("x", c)])]
            g = alt_anchor(p, f"P0w{c}", f"s_cmp_eq_u32 s{sPass},0", S(sPass), ["LDSF", "DSORD"], wait_alt, skip=[b[0]])
            return g + [b[1]]
        return b
    for c in range(8):
        slot = c
        if c > 0: R += proj_mfmas(w, 3, 1, c-1 == 0, Bf(c-1), B13f(c-1))
        R += proj_reads(kind, slot, 1, 1)
        R += proj_mfmas(w, 0, 0, c == 0, Bf(c), B13f(c))
        R += proj_reads(kind, slot, 2, 0)
        R += proj_mfmas(w, 1, 1, c == 0, Bf(c), B13f(c))
        R += proj_reads(kind, slot, 3, 1)
        R += proj_mfmas(w, 2, 0, c == 0, Bf(c), B13f(c))
        R += bar_for(c+1)
        nslot = (c+1) & 7
        if (c+1) & 3 == 0:
            d = 4*SL if c+1 == 4 else -4*SL
            R.append(valu(f"v_add_u32 v{vAX},{d & 0xffffffff},v{vAX}", V(vAX), V(vAX)))
        rr_ = proj_reads(kind, nslot, 0, 0)
        R += need_end(rr_) if c == 7 else rr_
        rr_ = b13_reads((c+1) & 7)
        R += need_end(rr_) if c == 7 else rr_
        R += dma_for(c+1)
    R += proj_mfmas(w, 3, 1, False, Bf(7), B13f(7))
    return R, b13_reads, Bf

def swap_frag(r):
    return [perm32(r, r+2), perm32(r+1, r+3), perm16(r, r+2), perm16(r+1, r+3)]
def pack_pair(dst, a, b):
    return [vcvt(dst, a, a+1), vcvt(dst+1, a+2, a+3), vcvt(dst+2, b, b+1), vcvt(dst+3, b+2, b+3)]

def epiA_common(w):
    L = []
    ss = f"s{sScale}"
    for s in range(4):
        for qt in range(3):
            a, b = acc(2*s, qt), acc(2*s+1, qt)
            L += [vmul_s(a+r, ss) for r in range(4)] + [vmul_s(b+r, ss) for r in range(4)]
            L += pack_pair(a, a, b) + swap_frag(a)
    a, b = acc13(0), acc13(1)
    L += [vmul_s(a+r, ss) for r in range(4)] + [vmul_s(b+r, ss) for r in range(4)]
    L += pack_pair(a, a, b) + swap_frag(a)
    return L
def epiA_head(w, h):
    L = [ds_w128(vAL, acc13(0), OFF_Q13[h] + 1024*w)]
    for s in range(4):
        for qt in range(3):
            a = acc(2*s, qt)
            for r in range(4):
                if h < 3:
                    d = QT + 48*h + 12*s + 4*qt + r
                    L.append(valu(f"v_mov_b32 v{d},v{a+r}", V(a+r), V(d)))
                else:
                    L.append(accw(T(3, s, qt)+r, a+r))
    if h == 3:
        for hh in range(3):
            for i in range(48): L.append(accw(48*hh+i, QT+48*hh+i))
    return L

def Sreg(sset, t): return SREG + 16*sset + 4*t
def Preg(pset, qt, p): return PREG + 24*pset + 8*qt + 4*p
def Qf(qt, s): return T(0, s, qt)
def Q13f(s): return B13 + 4*s
def need_end(L):
    for i in L: i.meta["need_end"] = True
    return L
def k_reads(kt, sg):
    return [ds_r128(pool(sg, s), vAK, kt*256 + s*64) for s in range(4)]
def v_reads(pair, sg):
    L = []
    for dtl in range(2):
        dt = 2*pair + dtl
        for p in range(2):
            for e in range(2):
                L.append(ds_tr(pool(sg, 2*dtl+p) + 2*e, vAX, (2*p+e)*256 + dt*32))
    return L
def qk_block(w, kt, sg, sset, with13, cinit=True):
    L = []
    tiles = [0, 1, 2] + ([3] if with13 else [])
    for t in tiles:
        for s in range(4):
            Bop = Qf(t, s) if t < 3 else Q13f(s)
            C = None if s else (('v', CREG + 4*t) if cinit else 0)
            L.append(mfma(('v', Sreg(sset, t)), ('a', pool(sg, s)), ('a', Bop), C))
    return L
def softmax_block(w, kt, sset, pset, with13, p13par):
    L = []
    tiles = ([3] if with13 else []) + [0, 1, 2]
    for t in tiles:
        r = Sreg(sset, t)
        L += [vexp(r+i) for i in range(4)]
        if t < 3:
            d = Preg(pset, t, kt >> 1) + 2*(kt & 1)
            L += [vcvt(d, r, r+1), vcvt(d+1, r+2, r+3)]
        else:
            L += [vcvt(r, r, r+1), vcvt(r+1, r+2, r+3)]
            L.append(ds_w64(vAL, r, OFF_P13 + 2048*p13par + 1024*(kt >> 1) + 8*(kt & 1)))
    return L
def pv_block(w, pair, sg, pset, first):
    L = []
    for dtl in range(2):
        dt = 2*pair + dtl
        for qt in range(3):
            for p in range(2):
                L.append(mfma(('v', acc(dt, qt)), ('a', pool(sg, 2*dtl+p)), ('v', Preg(pset, qt, p)), 0 if (first and p == 0) else None))
        if pair == w:
            for p in range(2):
                L.append(mfma(('v', acc13(dtl)), ('a', pool(sg, 2*dtl+p)), ('a', P13+4*p), 0 if (first and p == 0) else None))
    return L
def sum_block(pset, first):
    L = []
    for t in range(4):
        for p in range(2):
            Bop = ('v', Preg(pset, t, p)) if t < 3 else ('a', P13+4*p)
            L.append(mfma(('v', LACC+4*t), ('a', ONES), Bop, 0 if (first and p == 0) else None))
    return L
def p13_reads(par):
    return [ds_r128(P13+4*p, vAL, OFF_P13 + 2048*par + 1024*p) for p in range(2)]

def att_tail_dma(p, par, name):
    w = p.w
    sKold = sKa if ((par+1) & 1) == 0 else sKb
    sKnew = sKa if (par & 1) == 0 else sKb
    sVold = sVa if par == 0 else sVb
    sVnew = sVb if par == 0 else sVa
    L = []
    L.append(valu(f"v_add_u32 v{vAK},s{sKnew},v{vK0}", S(sKnew)+V(vK0), V(vAK)))
    L.append(valu(f"v_add_u32 v{vAX},s{sVnew},v{vV0}", S(sVnew)+V(vV0), V(vAX)))
    altK = []
    altK += [valu(f"v_subrev_u32 v255,{R1},v{vAL}", V(vAL), V(255)),
             valu(f"v_and_b32 v{vPat},0xf0,v255", V(255), V(vPat)),
             valu(f"v_lshrrev_b32 v255,8,v255", V(255), V(255)),
             valu(f"v_lshl_add_u32 v{vPat},v255,14,v{vPat}", V(255)+V(vPat), V(vPat))]
    altK += [valu(f"v_add_u32 v{vPat+j},{j*PAT_WO[1]},v{vPat}", V(vPat), V(vPat+j)) for j in range(1, 4)]
    altK += [salu(f"s_mul_hi_u32 s{sT0},s{sKold},{(1<<32)//SL+1}", S(sKold), S(sT0)),
             salu(f"s_lshl_b32 s{sT0},s{sT0},16", S(sT0), S(sT0))] + add64s(sB, sWO, sT0)
    altV = []
    altV += [valu(f"v_subrev_u32 v255,{R1},v{vAL}", V(vAL), V(255)),
             valu(f"v_and_b32 v{vPatV},0xf0,v255", V(255), V(vPatV)),
             valu(f"v_lshrrev_b32 v255,8,v255", V(255), V(255)),
             valu(f"v_lshl_add_u32 v{vPatV},v255,14,v{vPatV}", V(255)+V(vPatV), V(vPatV))]
    altV += [valu(f"v_add_u32 v{vPatV+j},{j*PAT_WO[1]},v{vPatV}", V(vPatV), V(vPatV+j)) for j in range(1, 4)]
    altV += [salu(f"s_mul_hi_u32 s{sT0},s{sVold},{(1<<32)//SL+1}", S(sVold), S(sT0)),
             salu(f"s_lshl_b32 s{sT0},s{sT0},16", S(sT0), S(sT0))] + add64s(sVB, sWO, sT0)
    altV_guard = [I(f"s_cmp_ge_u32 s{sCnt},29\ns_cbranch_scc0 {p.lbl(name+'K_r')}", "branch")]
    L = alt_anchor(p, name+"K", f"s_cmp_ge_u32 s{sCnt},28", S(sCnt)+S(sKold)+S(sVold)+S(sWO,2),
                   S(sB,2)+V(vPat,4)+V(255)+S(sT0)+S(sVB,2)+V(vPatV,4), altK + altV_guard + altV) + L
    itemK = lambda ctx: ("K", ctx["nb"]+4) if ctx["nb"]+4 <= 31 else ("wo", 0, [0,1,3,5][(ctx["nb"]+4) & 3])
    L += dma_item_dyn(w, sKold, vPat, 4, sB, item=itemK)
    L += add64(sB, sB, 16384)
    itemV = lambda ctx: ("V", ctx["nb"]+3) if ctx["nb"]+3 <= 31 else ("wo", 0, [2,4,6,7][(ctx["nb"]+3) & 3])
    L += dma_item_dyn(w, sVold, vPatV, 4, sVB, item=itemV)
    L += add64(sVB, sVB, 16384)
    kc = 3*SL if sKold == sKa else 6*SL
    vc = 8*SL if sVold == sVa else 11*SL
    L.append(salu(f"s_sub_u32 s{sKold},{kc},s{sKold}", S(sKold), S(sKold)))
    L.append(salu(f"s_sub_u32 s{sVold},{vc},s{sVold}", S(sVold), S(sVold)))
    L.append(salu(f"s_add_u32 s{sCnt},s{sCnt},1", S(sCnt), S(sCnt)))
    return L

def att_bar():
    need = lambda ctx: [x for x in (("K", ctx["nb"]+1) if ctx["nb"]+1 <= 31 else None, ("V", ctx["nb"])) if x]
    b = barrier(vm=16, needs=need)
    b[0].meta["isattbar"] = True
    return b

def att_pro(p):
    w = p.w
    R = []
    R += k_reads(0, 1)
    R += qk_block(w, 0, 1, 1, True, cinit=False)
    kt0 = w & 3
    R += k_reads(kt0, 0)
    for t in range(4):
        r = Sreg(1, t); c = CREG + 4*t
        R.append(valu(f"v_max3_f32 v{c},v{r},v{r+1},v{r+2}", V(r,3), V(c)))
        R.append(valu(f"v_max_f32 v{c},v{c},v{r+3}", V(c)+V(r+3), V(c)))
        R.append(valu(f"v_mov_b32 v{c+1},v{c}", V(c), V(c+1)))
        R.append(perm16(c, c+1))
        R.append(valu(f"v_max_f32 v{c},v{c},v{c+1}", V(c,2), V(c)))
        R.append(valu(f"v_mov_b32 v{c+1},v{c}", V(c), V(c+1)))
        R.append(perm32(c, c+1))
        R.append(valu(f"v_max_f32 v{c},v{c},v{c+1}", V(c,2), V(c)))
        R.append(valu(f"v_mul_f32 v{c},-1.0,v{c}", V(c), V(c)))
        for i in range(1, 4): R.append(valu(f"v_mov_b32 v{c+i},v{c}", V(c), V(c+i)))
    for j in range(4):
        kt = (w + j) & 3
        if j < 3: R += k_reads((w+j+1) & 3, (j+1) & 1)
        R += qk_block(w, kt, j & 1, j & 1, j == 0)
        R += softmax_block(w, kt, j & 1, 0, j == 0, 0)
    R += att_bar()
    R += att_tail_dma(p, 1, "Pro")
    R += need_end(k_reads(w & 3, 0))
    return R

def att_iter(p, par, first, name):
    w = p.w
    R = []
    R += p13_reads(par)
    for j in range(4):
        kt = (w + j) & 3
        pair = (w + 1 + j) & 3
        R += v_reads(pair, 1)
        R += qk_block(w, kt, 0, j & 1, j == 0)
        if j < 3: R += k_reads((w+j+1) & 3, 0)
        R += softmax_block(w, kt, j & 1, par ^ 1, j == 0, par ^ 1)
        if j == 3:
            R += att_bar()
            R += att_tail_dma(p, par, name)
            R += need_end(k_reads(w & 3, 0))
        R += pv_block(w, pair, 1, par, first)
    R += sum_block(par, first)
    return R

def att_last(p):
    w = p.w; par = 1
    R = []
    R += p13_reads(par)
    R += v_reads((w+1) & 3, 1)
    for j in range(4):
        pair = (w + 1 + j) & 3
        sg = (j + 1) & 1
        if j < 3: R += v_reads((w+2+j) & 3, j & 1)
        R += pv_block(w, pair, sg, par, False)
    R += sum_block(par, False)
    return R

def epiB_common(p):
    L = []
    rl = vT
    for t in range(4):
        L.append(valu(f"v_rcp_f32 v{rl+t},v{LACC+4*t}", V(LACC+4*t), V(rl+t), kind="trans"))
    for s in range(4):
        for qt in range(3):
            a, b = acc(2*s, qt), acc(2*s+1, qt)
            L += [vmul_s(a+r, f"v{rl+qt}") for r in range(4)] + [vmul_s(b+r, f"v{rl+qt}") for r in range(4)]
            L += pack_pair(a, a, b)
    a, b = acc13(0), acc13(1)
    L += [vmul_s(a+r, f"v{rl+3}") for r in range(4)] + [vmul_s(b+r, f"v{rl+3}") for r in range(4)]
    L += pack_pair(a, a, b)
    return L
def epiB_head(w, h):
    L = [ds_w128(vAL, acc13(0), OFF_Q13[h] + 1024*w)]
    dst = (h+1) & 3
    if h < 3:
        for i in range(48): L.append(accm(i, 48*dst+i))
    for s in range(4):
        for qt in range(3):
            for r in range(4): L.append(accw(T(dst, s, qt)+r, acc(2*s, qt)+r))
    return L
def q13_reads(h):
    return [ds_r128(Q13f(s), vAL, OFF_Q13[h] + 1024*s) for s in range(4)]

def epiC(w):
    L = []
    for qt in range(3):
        Tq = 3*w + qt
        L += add64(sST, sWS, Tq*4096)
        for u in range(4):
            a, b = acc(2*u, qt), acc(2*u+1, qt)
            L += pack_pair(a, a, b)
            L.append(I(f"global_store_dwordx4 v{vAL},v[{a}:{a+3}],s[{sST}:{sST+1}] offset:{u*1024}", "vmem",
                       rd=V(vAL)+V(a,4)+S(sST,2)+["VMORD"], wr=["VMORD"], store=True, item=lambda ctx: ("st",)))
    L += add64(sST, sWS, 12*4096)
    a, b = acc13(0), acc13(1)
    L += pack_pair(a, a, b)
    L.append(I(f"global_store_dwordx4 v{vAL},v[{a}:{a+3}],s[{sST}:{sST+1}] offset:{w*1024}", "vmem",
               rd=V(vAL)+V(a,4)+S(sST,2)+["VMORD"], wr=["VMORD"], store=True, item=lambda ctx: ("st",)))
    return L

def wave_program(w):
    p = Prog(w)
    if PROFILE:
        p.add([salu("s_mov_b32 s62,0", [], S(62)), valu("v_accvgpr_write_b32 a252,0", [], A(252))])
        p.stamp()
    P = []
    a = lambda t, rd=(), wr=(): P.append(salu(t, rd, wr))
    a(f"s_and_b32 s{sT0},s2,7", ["s2"], S(sT0))
    a(f"s_lshr_b32 s{sT1},s2,3", ["s2"], S(sT1))
    a(f"s_lshr_b32 s{sT2},s{sT1},3", S(sT1), S(sT2))
    a(f"s_lshl_b32 s{sT0},s{sT0},2", S(sT0), S(sT0))
    a(f"s_add_u32 s{sT0},s{sT0},s{sT2}", S(sT0)+S(sT2), S(sT0))
    a(f"s_and_b32 s{sT1},s{sT1},7", S(sT1), S(sT1))
    a(f"s_mul_i32 s{sT2},s{sT0},212992", S(sT0), S(sT2)); P += add64s(sX, sX, sT2)
    a(f"s_lshl_b32 s{sT2},s{sT0},22", S(sT0), S(sT2))
    a(f"s_lshl_b32 s{sT3},s{sT1},19", S(sT1), S(sT3))
    a(f"s_add_u32 s{sT2},s{sT2},s{sT3}", S(sT2)+S(sT3), S(sT2))
    a(f"s_add_u32 s{sT2},s{sT2},{4*w*256}", S(sT2), S(sT2))
    P += add64s(sK0, sK0, sT2); P += add64s(sV0, sV0, sT2)
    rowoff = 4*(w >> 1) + 8*(w & 1)
    a(f"s_lshl_b32 s{sT2},s{sT1},10", S(sT1), S(sT2))
    a(f"s_add_u32 s{sT2},s{sT2},{rowoff*8192}", S(sT2), S(sT2))
    P += add64s(sWQ, sWQ, sT2)
    a(f"s_add_u32 s{sT2},s{sT3},{4*w*1024}", S(sT3), S(sT2))
    P += add64s(sWO, sWO, sT2)
    a(f"s_lshl_b32 s{sT2},s{sT0},3", S(sT0), S(sT2))
    a(f"s_add_u32 s{sT2},s{sT2},s{sT1}", S(sT2)+S(sT1), S(sT2))
    a(f"s_mul_i32 s{sT2},s{sT2},212992", S(sT2), S(sT2))
    P += add64s(sWS, sWS, sT2)
    a(f"s_sub_u32 s{sWS},s{sWS},{R1}", S(sWS), S(sWS))
    a(f"s_subb_u32 s{sWS+1},s{sWS+1},0", S(sWS+1), S(sWS+1))
    a(f"s_mov_b32 s{sScale},{f2u(SCALE):#x}", [], S(sScale))
    a(f"s_mov_b32 s{sThr},{f2u(2.0**40):#x}", [], S(sThr))
    a(f"s_mov_b32 s{sPass},0", [], S(sPass))
    P += lane_consts(w)
    P += calc_aW(vAX, 255, 0, 1)
    P += calc_pat(vPat, 255, 0, 1, *PAT_WQ)
    P += [valu("v_and_b32 v2,15,v255", V(255), V(2)), valu("v_lshlrev_b32 v2,10,v2", V(2), V(2)),
          valu("v_lshrrev_b32 v3,4,v255", V(255), V(3)), valu("v_lshl_add_u32 v2,v3,4,v2", V(2)+V(3), V(2))]
    for i in range(4): P.append(I(f"v_accvgpr_write_b32 a{ONES+i},s{sT3}", "valu", rd=S(sT3), wr=A(ONES+i)))
    P.insert(len(P)-4, salu(f"s_mov_b32 s{sT3},0x3f803f80", [], S(sT3)))
    xb = [40, 42, 44, 46]
    for qt in range(3): P += add64(xb[qt], sX, (48*w + 16*qt)*1024)
    P += add64(xb[3], sX, 192*1024)
    def gload(dst_txt, wr, sb, off, item):
        return I(f"global_load_dwordx4 {dst_txt},v2,s[{sb}:{sb+1}] offset:{off}", "vmem", rd=V(2)+S(sb,2)+["VMORD"], wr=wr+["VMORD"], item=item)
    for i in range(4):
        P.append(gload(f"v[{8+4*i}:{11+4*i}]", V(8+4*i,4), xb[3], (4*w+i)*64, lambda ctx: ("x13",)))
    def item_wq(c):
        return add64(sB, sWQ, c*64*8192) + dma_item_static(w, c, vPat, sB, item=lambda ctx, c=c: ("wq", 0, c))
    def xload(c):
        L = []
        for pp in range(2):
            for qt in range(3):
                s = 2*c+pp
                L.append(gload(f"a[{XF(s,qt)}:{XF(s,qt)+3}]", A(XF(s,qt),4), xb[qt], s*64, lambda ctx, c=c: ("x", c)))
        return L
    for c in range(5): P += item_wq(c) + xload(c)
    p.add(P); p.stamp(); P = []
    P.append(I("s_waitcnt vmcnt(50)", "wait", vm=50))
    p.add(P); p.stamp(); P = []
    for i in range(4): P.append(ds_w128(vAL, 8+4*i, 1024*(4*w+i)))
    P.append(I("s_waitcnt vmcnt(37)", "wait", vm=37))
    p.add(P); p.stamp(); P = []
    P += item_wq(5) + xload(5) + item_wq(6) + xload(6) + xload(7)
    p.add(P); p.stamp(); P = []
    b = barrier(vm=63, needs=lambda ctx: [("wq", 0, 0), ("x", 0)])
    P += b
    bodyA, b13A, _ = pass_body(p, "A")
    P += proj_reads("W", 0, 0, 0) + b13A(0)
    P += add64(sB, sWQ, 7*64*8192) + dma_item_static(w, 7, vPat, sB, item=lambda ctx: ("wq", 0, 7))
    p.add(P)
    p.label("LA")
    p.add([I("LG 0", "wait", lgkm=0)])
    p.stamp()
    p.add(bodyA + epiA_common(w), sched=True)
    for h in range(4):
        if h < 3:
            p.add([salu(f"s_cmp_eq_u32 s{sPass},{h}", S(sPass), ["scc"]), I(f"s_cbranch_scc0 {p.lbl('EA%d'%(h+1))}", "branch", rd=["scc"])])
        p.add(epiA_head(w, h))
        if h < 3:
            p.add(add64(sWQ, sWQ, 256) + [salu(f"s_add_u32 s{sPass},s{sPass},1", S(sPass), S(sPass)),
                   I(f"s_branch {p.lbl('LA')}", "branch")])
            p.label(f"EA{h+1}")
    p.stamp()
    P = []
    P += lane_from_AL(vT)
    P += calc_aK(vK0, vT, vT+1, vT+2)
    P += calc_aV(vV0, vT, vT+1, vT+2)
    P += calc_pat(vPat, vT, vT+1, vT+2, *PAT_KV)
    P += [valu(f"v_mov_b32 v{vPatV+j},v{vPat}", V(vPat), V(vPatV+j)) for j in range(4)]
    P += [salu(f"s_mov_b32 s{sKa},0", [], S(sKa)), salu(f"s_mov_b32 s{sKb},{SL}", [], S(sKb)),
          salu(f"s_mov_b32 s{sVa},{2*SL}", [], S(sVa)), salu(f"s_mov_b32 s{sVb},{7*SL}", [], S(sVb)),
          salu(f"s_mov_b32 s{sCnt},0", [], S(sCnt)), salu(f"s_mov_b32 s{sHead},0", [], S(sHead))]
    P += add64(sB, sK0, 4*16384) + add64(sVB, sV0, 3*16384)
    P += barrier(vm=None)
    p.add(P)
    p.label("LB")
    for h in range(4):
        if h < 3:
            p.add([salu(f"s_cmp_eq_u32 s{sHead},{h}", S(sHead), ["scc"]), I(f"s_cbranch_scc0 {p.lbl('QB%d'%(h+1))}", "branch", rd=["scc"])])
        p.add(q13_reads(h))
        if h < 3:
            p.add([I(f"s_branch {p.lbl('QBX')}", "branch")]); p.label(f"QB{h+1}")
    p.label("QBX")
    p.add([I("LG 0", "wait", lgkm=0),
           valu(f"v_mov_b32 v{vAK},v{vK0}", V(vK0), V(vAK))])
    p.stamp()
    p.add(att_pro(p), sched=True)
    p.add([I("LG 0", "wait", lgkm=0)])
    p.stamp()
    p.add(att_iter(p, 0, True, "It0"), sched=True)
    p.add([salu(f"s_mov_b32 s{sPass},3", [], S(sPass))])
    p.stamp()
    p.label("LI")
    p.add([I("LG 0", "wait", lgkm=0)])
    p.add(att_iter(p, 1, False, "ItO"), sched=True)
    p.add([I("LG 0", "wait", lgkm=0)])
    p.add(att_iter(p, 0, False, "ItE"), sched=True)
    p.add([salu(f"s_sub_u32 s{sPass},s{sPass},1", S(sPass), S(sPass)),
           salu(f"s_cmp_lg_u32 s{sPass},0", S(sPass), ["scc"]), I(f"s_cbranch_scc1 {p.lbl('LI')}", "branch", rd=["scc"])])
    p.add([I("LG 0", "wait", lgkm=0)])
    p.stamp()
    p.add(att_last(p) + epiB_common(p), sched=True)
    p.stamp()
    for h in range(4):
        if h < 3:
            p.add([salu(f"s_cmp_eq_u32 s{sHead},{h}", S(sHead), ["scc"]), I(f"s_cbranch_scc0 {p.lbl('EB%d'%(h+1))}", "branch", rd=["scc"])])
        p.add(epiB_head(w, h))
        if h < 3:
            p.add([salu(f"s_add_u32 s{sHead},s{sHead},1", S(sHead), S(sHead)), I(f"s_branch {p.lbl('LB')}", "branch")])
            p.label(f"EB{h+1}")
    P = []
    P += [valu(f"v_mov_b32 v{vAX},v{vV0}", V(vV0), V(vAX)), salu(f"s_mov_b32 s{sPass},0", [], S(sPass))]
    P += barrier(vm=24, needs=lambda ctx: [("wo", 0, 0)])
    bodyC, b13C, _ = pass_body(p, "C")
    P += proj_reads("V", 0, 0, 0) + b13C(0)
    P += add64(sB, sWO, 7*64*1024) + dma_item_static(w, 7, vPat, sB, item=lambda ctx: ("wo", 0, 7))
    p.add(P)
    p.label("LC")
    p.add([I("LG 0", "wait", lgkm=0)])
    p.stamp()
    p.add(bodyC, sched=True)
    p.stamp()
    p.add(epiC(w))
    p.add(add64(sWO, sWO, 256) + add64(sWS, sWS, 53248) +
          [salu(f"s_add_u32 s{sPass},s{sPass},1", S(sPass), S(sPass)),
           salu(f"s_cmp_lg_u32 s{sPass},4", S(sPass), ["scc"]), I(f"s_cbranch_scc1 {p.lbl('LC')}", "branch", rd=["scc"])])
    p.stamp()
    p.add([I("s_waitcnt vmcnt(0) lgkmcnt(0)", "wait", lgkm=0, vm=0)])
    p.stamp()
    p.stamp_flush()
    p.add([I("s_waitcnt vmcnt(0) lgkmcnt(0)", "wait", lgkm=0, vm=0), I("s_endpgm", "end")])
    return p

HEADER = open("standalone__mha_block_cached__near_ridge.s.ref").read().split("; Override launch")[0]

def kd(name, vgpr, accum, sgpr=96):
    return f""".section .rodata,"a"
.p2align 6
.amdhsa_kernel {name}
  .amdhsa_next_free_vgpr {vgpr}
  .amdhsa_next_free_sgpr {sgpr}
  .amdhsa_accum_offset {accum}
  .amdhsa_group_segment_fixed_size 0
  .amdhsa_kernarg_size 64
  .amdhsa_user_sgpr_count 2
  .amdhsa_user_sgpr_kernarg_segment_ptr 1
  .amdhsa_system_sgpr_workgroup_id_x 1
  .amdhsa_float_denorm_mode_32 3
.end_amdhsa_kernel
"""

def reduce_kernel():
    n = "mha_reduce_kernel"
    L = []
    a = L.append
    a(f".text\n.globl {n}\n.p2align 8\n.type {n},@function\n{n}:")
    a("s_cmp_ge_u32 s2,1664"); a("s_cbranch_scc1 RED_END")
    a("s_load_dwordx2 s[4:5],s[0:1],56"); a("s_load_dwordx2 s[6:7],s[0:1],40")
    a("v_lshrrev_b32 v1,6,v0"); a("s_nop 0"); a("v_readfirstlane_b32 s8,v1")
    a("s_lshl_b32 s9,s2,2"); a("s_nop 2"); a("s_add_u32 s8,s8,s9")
    a(f"s_mul_hi_u32 s10,s8,{(1<<32)//208+1}")
    a("s_mul_i32 s11,s10,208"); a("s_sub_u32 s11,s8,s11")
    a(f"s_mul_hi_u32 s12,s11,{(1<<32)//52+1}")
    a("s_mul_i32 s13,s12,52"); a("s_sub_u32 s13,s11,s13")
    a("s_mul_i32 s14,s10,1703936"); a("s_mul_i32 s15,s12,53248"); a("s_add_u32 s14,s14,s15")
    a("s_lshl_b32 s15,s13,10"); a("s_add_u32 s14,s14,s15")
    a("v_and_b32 v2,63,v0"); a("v_lshlrev_b32 v3,4,v2")
    a("s_waitcnt lgkmcnt(0)")
    a("s_add_u32 s4,s4,s14"); a("s_addc_u32 s5,s5,0")
    for g in range(8):
        a(f"global_load_dwordx4 v[{8+4*g}:{11+4*g}],v3,s[4:5]")
        if g < 7: a("s_add_u32 s4,s4,212992"); a("s_addc_u32 s5,s5,0")
    a("s_lshr_b32 s16,s13,2"); a("s_and_b32 s17,s13,3")
    a("s_mul_i32 s18,s10,208"); a("s_lshl_b32 s16,s16,4"); a("s_add_u32 s18,s18,s16"); a("s_lshl_b32 s18,s18,10")
    a("s_lshl_b32 s19,s12,8"); a("s_add_u32 s18,s18,s19"); a("s_lshl_b32 s19,s17,6"); a("s_add_u32 s18,s18,s19")
    a("s_add_u32 s6,s6,s18"); a("s_addc_u32 s7,s7,0")
    a("v_and_b32 v4,15,v2"); a("v_lshlrev_b32 v4,10,v4"); a("v_lshrrev_b32 v5,4,v2"); a("v_lshl_add_u32 v4,v5,4,v4")
    a("s_mov_b32 s20,0xffff0000")
    for g in range(8):
        a(f"s_waitcnt vmcnt({7-g})")
        for i in range(4):
            r = 8+4*g+i
            if g == 0:
                a(f"v_lshlrev_b32 v{48+2*i},16,v{r}"); a(f"v_and_b32 v{49+2*i},s20,v{r}")
            else:
                a(f"v_lshlrev_b32 v6,16,v{r}"); a(f"v_and_b32 v7,s20,v{r}")
                a(f"v_add_f32 v{48+2*i},v{48+2*i},v6"); a(f"v_add_f32 v{49+2*i},v{49+2*i},v7")
    for i in range(4): a(f"v_cvt_pk_bf16_f32 v{56+i},v{48+2*i},v{49+2*i}")
    a("s_nop 1")
    a("v_permlane32_swap_b32 v56,v58"); a("v_permlane32_swap_b32 v57,v59"); a("s_nop 1")
    a("v_permlane16_swap_b32 v56,v58"); a("v_permlane16_swap_b32 v57,v59"); a("s_nop 1")
    a("global_store_dwordx4 v4,v[56:59],s[6:7]")
    a("RED_END:"); a("s_endpgm")
    return "\n".join(L) + "\n" + kd(n, 64, 64, 32)

def main():
    n = "mha_main_kernel"
    progs = [wave_program(w) for w in range(4)]
    out = [HEADER.rstrip("\n")]
    out.append(f"; @launch kernel={n} grid=(256,1,1) block=(256,1,1) lds={LDS_BYTES}")
    out.append(f"; @launch kernel=mha_reduce_kernel grid=(1664,1,1) block=(256,1,1) lds=0")
    out.append('.amdgcn_target "amdgcn-amd-amdhsa--gfx950"')
    out.append(MACROS)
    out.append(f".text\n.globl {n}\n.p2align 8\n.type {n},@function\n{n}:")
    E = ["s_cmp_ge_u32 s2,256", "s_cbranch_scc0 GO", "s_endpgm", "GO:",
         "s_load_dwordx4 s[4:7],s[0:1],0", "s_load_dwordx4 s[8:11],s[0:1],16", "s_load_dwordx2 s[12:13],s[0:1],32",
         "s_load_dwordx2 s[14:15],s[0:1],56",
         "v_lshrrev_b32 v1,6,v0", "s_nop 0", "v_readfirstlane_b32 s28,v1", "s_waitcnt lgkmcnt(0)"]
    for w in range(1, 4):
        E += [f"s_cmp_eq_u32 s28,{w}", f"s_cbranch_scc0 NX{w}", "s_getpc_b64 s[30:31]", f"PC{w}:",
              f"s_add_u32 s30,s30,W{w}-PC{w}", "s_addc_u32 s31,s31,0", "s_setpc_b64 s[30:31]", f"NX{w}:"]
    out += E
    for w, p in enumerate(progs):
        out.append(".p2align 6"); out.append(f"W{w}:")
        out += [i.txt for i in p.main]
        out += [i.txt for i in p.ool]
    out.append(kd(n, 512, 256))
    out.append(reduce_kernel())
    txt = "\n".join(out) + "\n"
    return txt, progs

if __name__ == "__main__":
    txt, progs = main()
    dst = sys.argv[1] if len(sys.argv) > 1 else "standalone__mha_block_cached__near_ridge.s"
    open(dst, "w").write(txt)
    print("bytes", len(txt), "instrs/wave", [len(p.main)+len(p.ool) for p in progs])
```

```python
import re

def V(i, n=1): return [f"v{k}" for k in range(i, i+n)]
def A(i, n=1): return [f"a{k}" for k in range(i, i+n)]
def S(i, n=1): return [f"s{k}" for k in range(i, i+n)]
def rr(c, i, n):
    return f"{c}{i}" if n == 1 else f"{c}[{i}:{i+n-1}]"

class I:
    __slots__ = ("txt", "kind", "rd", "wr", "cost", "meta", "after_gap", "srcc", "dreg")
    def __init__(self, txt, kind, rd=(), wr=(), cost=None, **meta):
        self.txt = txt; self.kind = kind
        self.rd = list(rd); self.wr = list(wr)
        self.cost = cost if cost is not None else {"valu":4,"trans":8,"perm":4,"dsr":4,"dsw":4,"dma":4,"vmem":4,"salu":1,"mfma":8}.get(kind, 1)
        self.meta = meta
        self.srcc = meta.get("srcc", [])
        self.dreg = meta.get("dreg", None)
    def __repr__(self): return self.txt

def reg(cls, i, n): return (cls, i, n)
def regs(r): return [f"{r[0]}{k}" for k in range(r[1], r[1]+r[2])]
def rtxt(r): return rr(r[0], r[1], r[2])

def mfma(D, Aop, Bop, C):
    d = (D[0], D[1], 4); a = (Aop[0], Aop[1], 4); b = (Bop[0], Bop[1], 4)
    if C is None: c = d; ctxt = rtxt(d); crd = regs(d)
    elif C == 0: ctxt = "0"; crd = []
    else: c = (C[0], C[1], 4); ctxt = rtxt(c); crd = regs(c)
    key = (D[0], Aop[0], Bop[0])
    if D[0] == 'v' and Aop[0] == 'a':
        if C is None: txt = f"M{Bop[0]} {D[1]},{Aop[1]},{Bop[1]}"
        elif C == 0:  txt = f"Z{Bop[0]} {D[1]},{Aop[1]},{Bop[1]}"
        elif C[0] == 'v': txt = f"C{Bop[0]} {D[1]},{Aop[1]},{Bop[1]},{C[1]}"
        else: raise ValueError
    else:
        txt = f"v_mfma_f32_16x16x32_bf16 {rtxt(d)},{rtxt(a)},{rtxt(b)},{ctxt}"
    return I(txt, "mfma", rd=regs(a)+regs(b)+crd, wr=regs(d), srcc=crd, dreg=(d, C is None), ab=regs(a)+regs(b))

MACROS = r"""
.macro Ma d,a,b
v_mfma_f32_16x16x32_bf16 v[\d:\d+3],a[\a:\a+3],a[\b:\b+3],v[\d:\d+3]
.endm
.macro Mv d,a,b
v_mfma_f32_16x16x32_bf16 v[\d:\d+3],a[\a:\a+3],v[\b:\b+3],v[\d:\d+3]
.endm
.macro Za d,a,b
v_mfma_f32_16x16x32_bf16 v[\d:\d+3],a[\a:\a+3],a[\b:\b+3],0
.endm
.macro Zv d,a,b
v_mfma_f32_16x16x32_bf16 v[\d:\d+3],a[\a:\a+3],v[\b:\b+3],0
.endm
.macro Ca d,a,b,c
v_mfma_f32_16x16x32_bf16 v[\d:\d+3],a[\a:\a+3],a[\b:\b+3],v[\c:\c+3]
.endm
.macro Cv d,a,b,c
v_mfma_f32_16x16x32_bf16 v[\d:\d+3],a[\a:\a+3],v[\b:\b+3],v[\c:\c+3]
.endm
.macro TR d,r,o
ds_read_b64_tr_b16 a[\d:\d+1],v\r offset:\o
.endm
.macro RD d,r,o
ds_read_b128 a[\d:\d+3],v\r offset:\o
.endm
.macro EX d
v_exp_f32 v\d,v\d
.endm
.macro CV d,a,b
v_cvt_pk_bf16_f32 v\d,v\a,v\b
.endm
.macro DM p,s,o
global_load_lds_dwordx4 v\p,s[\s:\s+1] offset:\o nt
.endm
.macro AW d,s
v_accvgpr_write_b32 a\d,v\s
.endm
.macro AM d,s
v_accvgpr_mov_b32 a\d,a\s
.endm
.macro MU d,s
v_mul_f32 v\d,\s,v\d
.endm
.macro LG n
s_waitcnt lgkmcnt(\n)
.endm
"""

def ds_tr(da, vaddr, off, fence="LDSF"):
    assert 0 <= off < 65536, off
    return I(f"TR {da},{vaddr},{off}", "dsr", rd=[f"v{vaddr}", fence, "DSORD"], wr=A(da,2)+["DSORD"])
def ds_r128(da, vaddr, off, fence="LDSF"):
    assert 0 <= off < 65536, off
    return I(f"RD {da},{vaddr},{off}", "dsr", rd=[f"v{vaddr}", fence, "DSORD"], wr=A(da,4)+["DSORD"])
def ds_r128v(dv, vaddr, off, fence="LDSF"):
    assert 0 <= off < 65536, off
    return I(f"ds_read_b128 v[{dv}:{dv+3}],v{vaddr} offset:{off}", "dsr", rd=[f"v{vaddr}", fence, "DSORD"], wr=V(dv,4)+["DSORD"])
def ds_w128(vaddr, sv, off, fence="LDSF"):
    assert 0 <= off < 65536, off
    return I(f"ds_write_b128 v{vaddr},v[{sv}:{sv+3}] offset:{off}", "dsw", rd=[f"v{vaddr}", fence, "DSORD"]+V(sv,4), wr=["DSORD"])
def ds_w64(vaddr, sv, off, fence="LDSF"):
    assert 0 <= off < 65536, off
    return I(f"ds_write_b64 v{vaddr},v[{sv}:{sv+1}] offset:{off}", "dsw", rd=[f"v{vaddr}", fence, "DSORD"]+V(sv,2), wr=["DSORD"])
def dma(vpat, sbase, off, item=None):
    return I(f"DM {vpat},{sbase},{off}", "dma", rd=[f"v{vpat}", "m0", "LDSF", "VMORD"]+S(sbase,2), wr=["VMORD"], item=item, dl_rel=14)
def dma_next(vpat, sbase, off, m0next, item=None):
    i = dma(vpat, sbase, off, item)
    if m0next:
        i.txt += "\n" + m0next; i.wr = i.wr + ["m0"]; i.meta["fused_m0"] = True
    return i
def vexp(d): return I(f"EX {d}", "trans", rd=V(d), wr=V(d))
def vcvt(d, a, b): return I(f"CV {d},{a},{b}", "valu", rd=V(a)+V(b), wr=V(d))
def valu(txt, rd, wr, kind="valu"): return I(txt, kind, rd=rd, wr=wr)
def salu(txt, rd, wr): return I(txt, "salu", rd=rd, wr=wr)
def accw(da, sv): return I(f"AW {da},{sv}", "valu", rd=V(sv), wr=A(da))
def accm(da, sa): return I(f"AM {da},{sa}", "valu", rd=A(sa), wr=A(da))
def vmul_s(d, s): return I(f"MU {d},{s}", "valu", rd=V(d)+([s] if s.startswith('s') or s.startswith('v') else []), wr=V(d))
def perm32(a, b): return I(f"v_permlane32_swap_b32 v{a},v{b}", "perm", rd=V(a)+V(b), wr=V(a)+V(b))
def perm16(a, b): return I(f"v_permlane16_swap_b32 v{a},v{b}", "perm", rd=V(a)+V(b), wr=V(a)+V(b))
def barrier(vm=None, needs=None):
    w = "s_waitcnt " + (f"vmcnt({vm}) " if vm is not None else "") + "lgkmcnt(0)"
    return [I(w, "wait", rd=[], wr=["LDSF", "DSORD"], anchor=True, vm=vm, lgkm=0, needs=needs),
            I("s_barrier", "bar", rd=[], wr=["LDSF"], anchor=True)]
def raw(txt, kind="salu", rd=(), wr=(), **meta): return I(txt, kind, rd=rd, wr=wr, **meta)

def is_anchor(ins): return ins.kind == "mfma" or ins.meta.get("anchor", False)

def schedule(region, gapbudget=8, lat_ds=7, mfma_to_valu=4, maxsalu=2, window=6):
    n = len(region)
    preds = [set() for _ in range(n)]; succs = [set() for _ in range(n)]
    rawm = [set() for _ in range(n)]
    last_w = {}; readers = {}
    for i, ins in enumerate(region):
        for r in ins.rd:
            if r in last_w:
                preds[i].add(last_w[r])
                if region[last_w[r]].kind == "mfma" and ins.kind != "mfma": rawm[i].add(last_w[r])
        for r in ins.wr:
            if r in last_w:
                preds[i].add(last_w[r])
                if region[last_w[r]].kind == "mfma" and ins.kind != "mfma": rawm[i].add(last_w[r])
            for j in readers.get(r, ()):
                if j != i: preds[i].add(j)
        for r in ins.rd: readers.setdefault(r, []).append(i)
        for r in ins.wr: last_w[r] = i; readers[r] = []
    for i in range(n):
        preds[i].discard(i)
        for p in preds[i]: succs[p].add(i)
    anchors = [i for i in range(n) if is_anchor(region[i])]
    apos = {}; k = 0
    for i in anchors:
        apos[i] = k
        if region[i].kind == "mfma": k += 1
    nm = k
    ppos = [0]*n; k = 0
    for i in range(n):
        ppos[i] = k
        if region[i].kind == "mfma": k += 1
    dl = [None]*n
    for i in range(n-1, -1, -1):
        if i in apos: dl[i] = apos[i]; continue
        d = nm + 1000
        for s in succs[i]:
            ki, ks = region[i].kind, region[s].kind
            lat = 0
            if ki == "dsr" and any(r in region[s].rd for r in region[i].wr if r != "DSORD"): lat = lat_ds
            elif ki in ("dsr", "dsw") and ks in ("wait", "branch") and "LDSF" in region[s].wr: lat = lat_ds
            elif ki in ("trans","valu","perm") and ks == "mfma": lat = 1
            elif ki == "trans": lat = 1
            elif ki in ("valu","perm") and ks == "perm": lat = 1
            d = min(d, dl[s] - lat)
        if region[i].meta.get("need_end"): d = min(d, nm - lat_ds)
        if region[i].meta.get("dl_rel") is not None: d = min(d, ppos[i] + region[i].meta["dl_rel"])
        dl[i] = d + region[i].meta.get("dl_bias", 0)
    emitted = [False]*n; out = []; gap_of = [None]*n
    npend = [len(preds[i]) for i in range(n)]
    ready = set(i for i in range(n) if npend[i] == 0 and i not in apos)
    cur_gap = [0]
    def emit(i):
        emitted[i] = True; gap_of[i] = cur_gap[0]; out.append(region[i])
        ready.discard(i)
        for s in succs[i]:
            npend[s] -= 1
            if npend[s] == 0 and s not in apos: ready.add(s)
    def force(i):
        stack = sorted(p for p in preds[i] if not emitted[p])
        for p in stack:
            if emitted[p]: continue
            assert p not in apos, f"anchor pred not emitted: {region[p]} before {region[i]}"
            force(p); emit(p)
    def earliest_ok(i):
        for p in rawm[i]:
            if cur_gap[0] < apos[p] + mfma_to_valu: return False
        if region[i].kind == "dsr" and cur_gap[0] < dl[i] - window: return False
        if region[i].kind == "dma":
            for p in preds[i]:
                if "m0" in region[p].wr and gap_of[p] == cur_gap[0] and region[p].kind == "salu": return False
        mg = region[i].meta.get("min_gap")
        if mg is not None and cur_gap[0] < mg: return False
        return True
    for a in anchors:
        force(a); emit(a)
        if region[a].kind != "mfma": continue
        cur_gap[0] = apos[a] + 1
        budget = gapbudget; nsalu = 0; nvm = 0; had_trans = False
        while True:
            cands = [i for i in ready if earliest_ok(i)]
            cands.sort(key=lambda i: (dl[i] if dl[i] < nm + 500 else nm + 500, i))
            pick = None
            for i in cands:
                ins = region[i]
                if ins.kind == "salu":
                    if nsalu < maxsalu: pick = i; break
                    continue
                if ins.kind in ("dma", "vmem") and nvm >= 1: continue
                if had_trans: continue
                if ins.cost <= budget: pick = i; break
            if pick is None: break
            ins = region[pick]
            if ins.kind == "salu": nsalu += 1
            else:
                budget -= ins.cost
                if ins.kind == "trans": had_trans = True
                if ins.kind in ("dma", "vmem"): nvm += 1
            emit(pick)
    for i in range(n):
        if not emitted[i]:
            force(i); emit(i)
    return out

def insert_lgkm(seq, pend=None):
    out = []; pend = [] if pend is None else pend
    for ins in seq:
        if ins.kind == "wait" and ins.meta.get("lgkm") is not None:
            k = ins.meta["lgkm"]; pend = pend[len(pend)-k:] if k else []
            out.append(ins); continue
        touch = set(r for r in ins.rd + ins.wr if r[0] in "va" and r[1:].isdigit())
        need = -1
        for j, d in enumerate(pend):
            if d & touch: need = j
        if need >= 0:
            nleft = len(pend) - need - 1
            out.append(I(f"LG {nleft}", "wait", lgkm=nleft, auto=True))
            pend = pend[need+1:]
        if ins.kind == "dsr":
            pend.append(set(r for r in ins.wr if r != "DSORD"))
        elif ins.kind == "dsw":
            pend.append(set())
        assert len(pend) <= 15, "lgkmcnt overflow"
        out.append(ins)
    return out, pend

def is_valu(k): return k in ("valu", "trans", "perm")
def need_states(P, C):
    pw = set(P.wr); pr = set(P.rd); cr = set(C.rd); cw = set(C.wr)
    reg = lambda s: set(r for r in s if r[0] in "va" and r[1:].isdigit())
    n = 0
    if is_valu(P.kind):
        if C.kind == "mfma" and reg(pw) & reg(cr): n = max(n, 2)
        if C.kind == "perm" and reg(pw) & reg(cr): n = max(n, 2)
        if P.kind == "trans" and C.kind in ("valu", "perm") and reg(pw) & reg(cr): n = max(n, 1)
        sw = set(r for r in pw if (r[0] == "s" and r[1:].isdigit()) or r == "vcc")
        if sw:
            if is_valu(C.kind) and sw & cr: n = max(n, 2)
            if C.kind in ("dma", "vmem") and sw & cr: n = max(n, 5)
            if C.kind in ("salu", "branch") and sw & cr: n = max(n, 1)
        if C.meta.get("readlane") and reg(pw) & reg(cr): n = max(n, 1)
    if P.kind == "mfma":
        D = reg(pw)
        if C.kind == "mfma":
            if D & set(C.meta["ab"]): n = max(n, 8)
            if D & set(C.srcc):
                same = C.dreg[1] and C.dreg[0] == P.dreg[0]
                if not same: n = max(n, 6)
            elif D & reg(cw):
                n = max(n, 6)
        elif is_valu(C.kind) or C.kind in ("dsr", "dsw", "vmem", "dma"):
            if D & (reg(cr) | reg(cw)): n = max(n, 8)
        if is_valu(C.kind) and set(P.srcc) & reg(cw): n = max(n, 3)
    if "m0" in pw and C.kind == "dma": n = max(n, 1)
    if P.kind == "vmem" and P.meta.get("store") and is_valu(C.kind) and reg(pr) & reg(cw): n = max(n, 2)
    return n
def states_of(ins):
    if ins.kind == "nop": return ins.meta["n"]
    if ins.kind == "label": return 0
    return 1 + ins.txt.count("\n") if not ins.meta.get("fused_m0") else 1
def fix_hazards(seq, hist=None, check_only=False):
    hist = [] if hist is None else list(hist)
    out = []; viol = []
    for ins in seq:
        if ins.kind != "label":
            dist = 0; need = 0
            for P in reversed(hist):
                r = need_states(P, ins)
                if r - dist > need: need = r - dist; culprit = P
                dist += states_of(P)
                if dist >= 10: break
            if need > 0:
                if check_only: viol.append((culprit, ins, need))
                else:
                    nop = I(f"s_nop {need-1}", "nop", n=need)
                    out.append(nop); hist.append(nop)
        out.append(ins); hist.append(ins)
        if len(hist) > 24: hist = hist[-24:]
    return out, hist, viol
```

```python
import sys, math, struct
sys.path.insert(0, "gen")
from asmlib import *

SL = 16896
PC = 1056
R1 = 8*SL
OFF_Q13 = [16384, 16384+4096, 16384+8192, 0]
OFF_P13 = 4096
LDS_BYTES = 163840
NAME = "standalone__mha_block_cached__near_ridge"

sX, sK0, sV0, sWQ, sWO, sWS, sB, sVB = 4, 6, 8, 10, 12, 14, 16, 18
sPass, sCnt, sKa, sKb, sVa, sVb, sScale, sThr = 20, 21, 22, 23, 24, 25, 26, 27
sT0, sT1, sT2, sT3 = 28, 29, 30, 31
sST = 32
sHead = 34
sDbg = 36
ACC = 0
def acc(dt, qt): return ACC + 12*dt + 4*qt
def acc13(e): return ACC + 96 + 4*e
QT = 104
LACC = 104
SREG = 120
PREG = 152
CREG = 200
vPatV = 216
vK0, vV0 = 220, 221
vT = 224
vAX, vAL, vPat, vAK, vTmp = 248, 249, 250, 254, 255
def T(k, s, qt): return 48*k + 12*s + 4*qt
def XF(s, qt): return 12*s + 4*qt
POOL = 192
def pool(sg, i): return POOL + 16*sg + 4*i
B13 = 224
ONES = 240
P13 = 244

import os
PROFILE = bool(os.environ.get("PROFILE"))
SCALE = math.log2(math.e) / math.sqrt(128.0)
def f2u(x): return struct.unpack("<I", struct.pack("<f", x))[0]

class Prog:
    def __init__(self, w):
        self.w = w; self.main = []; self.ool = []; self.hist = []; self.pend = []
    def lbl(self, name): return f"{name}_w{self.w}"
    def stamp(self):
        if not PROFILE: return
        self.add([I("s_memtime s[60:61]", "salu", wr=S(60,2)), I("s_waitcnt lgkmcnt(0)", "wait", lgkm=0),
                  valu("v_accvgpr_read_b32 v255,a252", A(252), V(255)), salu("s_mov_b32 m0,s62", S(62), ["m0"]), I("s_nop 1", "nop", n=2),
                  valu("v_writelane_b32 v255,s60,m0", V(255)+S(60), V(255)), I("s_nop 1", "nop", n=2),
                  valu("v_accvgpr_write_b32 a252,v255", V(255), A(252)),
                  salu("s_add_u32 s62,s62,1", S(62), S(62))])
    def stamp_flush(self):
        if not PROFILE: return
        w = self.w
        self.add([salu("s_lshl_b32 s60,s2,10", ["s2"], S(60)), salu(f"s_add_u32 s60,s60,{(64<<20) + w*256}", S(60), S(60)),
                  salu("s_load_dwordx2 s[62:63],s[0:1],56", [], S(62,2)), I("s_waitcnt lgkmcnt(0)", "wait", lgkm=0),
                  salu("s_add_u32 s62,s62,s60", S(62)+S(60), S(62)), salu("s_addc_u32 s63,s63,0", S(63), S(63)),
                  valu("v_accvgpr_read_b32 v255,a252", A(252), V(255)),
                  valu(f"v_subrev_u32 v254,{R1},v{vAL}", V(vAL), V(254)), valu("v_lshrrev_b32 v254,2,v254", V(254), V(254)),
                  I("global_store_dword v254,v255,s[62:63]", "vmem", rd=V(254)+V(255)+S(62,2), item=lambda ctx: ("st",))])
    def add(self, seq, sched=False, **kw):
        if sched: seq = schedule(seq, **kw)
        seq, self.pend = insert_lgkm(seq, self.pend)
        seq, self.hist, _ = fix_hazards(seq, self.hist)
        self.main += seq
    def label(self, name):
        self.main.append(I(f"{self.lbl(name)}:", "label"))
    def add_ool(self, name, seq, back):
        s = [I(f"{self.lbl(name)}:", "label")] + [I("s_nop 1", "nop", n=2)] + list(seq)
        s, _, _ = fix_hazards(s, [])
        s += [I("s_nop 1", "nop", n=2), I(f"s_branch {self.lbl(back)}", "branch")]
        self.ool += s

def alt_anchor(p, name, cmp_txt, rd, wr, seq, skip=()):
    back = name + "_r"
    p.add_ool(name, seq, back)
    g = [I(cmp_txt + f"\ns_cbranch_scc1 {p.lbl(name)}", "branch", rd=list(rd), wr=list(wr), anchor=True)]
    g += list(skip)
    g += [I(f"{p.lbl(back)}:", "label", anchor=True, wr=list(wr))]
    return g

def lane_consts(w):
    L = []
    L.append(valu("v_and_b32 v255,63,v0", V(0), V(255)))
    L.append(valu(f"v_lshlrev_b32 v{vAL},4,v255", V(255), V(vAL)))
    L.append(valu(f"v_add_u32 v{vAL},{R1},v{vAL}", V(vAL), V(vAL)))
    return L
def lane_from_AL(dst):
    return [valu(f"v_subrev_u32 v{dst},{R1},v{vAL}", V(vAL), V(dst)),
            valu(f"v_lshrrev_b32 v{dst},4,v{dst}", V(dst), V(dst))]
def calc_aW(dst, lane, t0, t1):
    return [valu(f"v_bfe_u32 v{t0},v{lane},2,3", V(lane), V(t0)),
            valu(f"v_mul_u32_u24 v{dst},{PC},v{t0}", V(t0), V(dst)),
            valu(f"v_lshrrev_b32 v{t0},5,v{lane}", V(lane), V(t0)),
            valu(f"v_lshlrev_b32 v{t0},8,v{t0}", V(t0), V(t0)),
            valu(f"v_and_b32 v{t1},3,v{lane}", V(lane), V(t1)),
            valu(f"v_lshlrev_b32 v{t1},3,v{t1}", V(t1), V(t1)),
            valu(f"v_add3_u32 v{dst},v{dst},v{t0},v{t1}", V(dst)+V(t0)+V(t1), V(dst))]
def calc_aV(dst, lane, t0, t1):
    return [valu(f"v_lshrrev_b32 v{t0},2,v{lane}", V(lane), V(t0)),
            valu(f"v_mul_u32_u24 v{dst},{PC},v{t0}", V(t0), V(dst)),
            valu(f"v_and_b32 v{t1},3,v{lane}", V(lane), V(t1)),
            valu(f"v_lshl_add_u32 v{dst},v{t1},3,v{dst}", V(t1)+V(dst), V(dst))]
def calc_aK(dst, lane, t0, t1):
    return [valu(f"v_and_b32 v{t0},15,v{lane}", V(lane), V(t0)),
            valu(f"v_mul_u32_u24 v{dst},{PC},v{t0}", V(t0), V(dst)),
            valu(f"v_lshrrev_b32 v{t1},4,v{lane}", V(lane), V(t1)),
            valu(f"v_lshl_add_u32 v{dst},v{t1},4,v{dst}", V(t1)+V(dst), V(dst))]
def calc_pat(dst4, lane, t0, t1, tshift, jstep):
    L = [valu(f"v_lshrrev_b32 v{t0},4,v{lane}", V(lane), V(t0)),
         valu(f"v_lshlrev_b32 v{t0},{tshift},v{t0}", V(t0), V(t0)),
         valu(f"v_and_b32 v{t1},15,v{lane}", V(lane), V(t1)),
         valu(f"v_lshl_add_u32 v{dst4},v{t1},4,v{t0}", V(t0)+V(t1), V(dst4))]
    for j in range(1, 4):
        L.append(valu(f"v_add_u32 v{dst4+j},{j*jstep},v{dst4}", V(dst4), V(dst4+j)))
    return L
PAT_WQ = (17, 8192-256); PAT_KV = (12, 0); PAT_WO = (14, 1024-256)

def add64(dst, src, lit):
    return [salu(f"s_add_u32 s{dst},s{src},{lit}\ns_addc_u32 s{dst+1},s{src+1},0", S(src,2), S(dst,2))]
def add64s(dst, src, sreg):
    return [salu(f"s_add_u32 s{dst},s{src},s{sreg}\ns_addc_u32 s{dst+1},s{src+1},0", S(src,2)+S(sreg), S(dst,2))]

def dma_item_static(w, slot, vpat, sbase, item=None):
    m0 = lambda j: slot*SL + (4*w + j)*PC - 256*j
    L = [salu(f"s_mov_b32 m0,{m0(0)}", [], ["m0"])]
    for j in range(4):
        L.append(dma_next(vpat+j, sbase, 256*j, f"s_mov_b32 m0,{m0(j+1)}" if j < 3 else None, item=item))
    return L
def dma_item_dyn(w, sslot, vpat0, npat, sbase, item=None):
    L = [salu(f"s_add_u32 m0,s{sslot},{4*w*PC}", S(sslot), ["m0"])]
    for j in range(4):
        L.append(dma_next(vpat0 + (j if npat == 4 else 0), sbase, 256*j, f"s_add_u32 m0,m0,{PC-256}" if j < 3 else None, item=item))
    return L

def proj_reads(kind, slot, blk, sg):
    L = []
    base = (slot & 3)*SL
    for dtl in range(2):
        dt = 2*blk + dtl
        for p in range(2):
            for e in range(2):
                if kind == "W": off = base + e*8*PC + p*512 + dt*32
                else:           off = base + (2*p+e)*256 + dt*32
                L.append(ds_tr(pool(sg, 2*dtl+p) + 2*e, vAX, off))
    return L
def proj_mfmas(w, blk, sg, first, Bf, B13f):
    L = []
    for dtl in range(2):
        dt = 2*blk + dtl
        for qt in range(3):
            for p in range(2):
                L.append(mfma(('v', acc(dt, qt)), ('a', pool(sg, 2*dtl+p)), ('a', Bf(qt, p)), 0 if (first and p == 0) else None))
        if blk == w:
            for p in range(2):
                L.append(mfma(('v', acc13(dtl)), ('a', pool(sg, 2*dtl+p)), ('a', B13f(p)), 0 if (first and p == 0) else None))
    return L

PREFETCH = int(os.environ.get("PF", "1"))
sPF = 38
STG = 104
def xload_ops(w, c):
    L = []
    for qt in range(3):
        for pp in range(2):
            s = 2*c+pp
            L.append(I(f"global_load_dwordx4 a[{XF(s,qt)}:{XF(s,qt)+3}],v254,s[{XB[qt]}:{XB[qt]+1}] offset:{s*64}", "vmem",
                       rd=V(254)+S(XB[qt],2)+["VMORD"], wr=A(XF(s,qt),4)+["VMORD"], item=lambda ctx, c=c: ("x", c), dl_rel=16))
    return L
XB = [40, 42, 44, 46]
def prefetch_ops(w, isV):
    if not PREFETCH: return []
    src = sV0 if isV else sK0
    L = [salu(f"s_lshl_b32 s{sT2},s{sPass},17", S(sPass), S(sT2))]
    L += add64s(sPF, src, sT2)
    L += add64(sPF, sPF, 31744*w)
    L += [valu(f"v_subrev_u32 v255,{R1},v{vAL}", V(vAL), V(255)), valu("v_lshlrev_b32 v255,5,v255", V(255), V(255))]
    L.append(I(f"global_load_dword a253,v255,s[{sPF}:{sPF+1}]", "vmem", rd=V(255)+S(sPF,2)+["VMORD"], wr=A(253)+["VMORD"],
               item=lambda ctx: ("pf",), dl_rel=30))
    return L
def stage(qt, u): return STG + 16*qt + 4*u
sMask = 36
def epiC_cvt(w):
    L = []
    for u in range(4):
        for qt in range(3):
            L += pack_pair(stage(qt, u), acc(2*u, qt), acc(2*u+1, qt))
    L += pack_pair(STG+48, acc13(0), acc13(1))
    return L
def epiC_stores(w, masked, spread):
    L = []; k = 0
    def st(reg, off):
        nonlocal k
        t = f"global_store_dwordx4 v{vAL},v[{reg}:{reg+3}],s[{sST}:{sST+1}] offset:{off}"
        if masked: t = f"s_mov_b64 exec,s[{sMask}:{sMask+1}]\n{t}\ns_mov_b64 exec,-1"
        meta = dict(store=True, item=lambda ctx: ("st",))
        if spread: meta.update(min_gap=16 + 26*k, dl_rel=16 + 26*k + 10)
        k += 1
        return I(t, "vmem", rd=V(vAL)+V(reg,4)+S(sST,2)+S(sMask,2)+["VMORD"], wr=["VMORD"], **meta)
    for qt in range(3):
        L += add64(sST, sWS, (3*w+qt)*4096)
        for u in range(4): L.append(st(stage(qt, u), u*1024))
    L += add64(sST, sWS, 12*4096)
    L.append(st(STG+48, w*1024))
    return L

def pass_body(p, phase, pass0=False):
    w = p.w
    kind = "W" if phase == "A" else "V"
    R = []
    def Bf(c):
        if phase == "A": return lambda qt, pp: XF(2*c+pp, qt)
        hh = c >> 1
        return lambda qt, pp: T((hh+1) & 3, 2*(c & 1)+pp, qt)
    def b13_reads(c):
        L = []
        for pp in range(2):
            if phase == "A": off = 1024*(2*c+pp)
            else: off = OFF_Q13[c >> 1] + 1024*(2*(c & 1)+pp)
            L.append(ds_r128(B13 + 8*(c & 1) + 4*pp, vAL, off))
        return L
    B13f = lambda c: (lambda pp: B13 + 8*(c & 1) + 4*pp)
    def dma_for(c):
        ch = c - 1
        L = []
        if phase == "A" and pass0:
            if c+2 <= 6:
                L += add64(sB, sWQ, (c+2)*64*8192) + dma_item_static(w, c+2, vPat, sB, item=lambda ctx, c=c: ("wq", 0, c+2))
            if c+2 <= 7: L += xload_ops(w, c+2)
            L += add64(sB, sWQ, 256 + ch*64*8192)
            item = lambda ctx, ch=ch: ("wq", 1, ch)
        elif phase == "A":
            altL = []
            if c == 1:
                altL += [valu(f"v_subrev_u32 v255,{R1},v{vAL}", V(vAL), V(255)),
                         valu(f"v_and_b32 v{vPat},0xf0,v255", V(255), V(vPat)),
                         valu(f"v_lshrrev_b32 v255,8,v255", V(255), V(255)),
                         valu(f"v_lshl_add_u32 v{vPat},v255,12,v{vPat}", V(255)+V(vPat), V(vPat))]
                altL += [valu(f"v_mov_b32 v{vPat+j},v{vPat}", V(vPat), V(vPat+j)) for j in range(1, 4)]
            if c <= 7:
                kv = ["K0","K1","V0","K2","V1","K3","V2"][ch]
                src = sK0 if kv[0] == "K" else sV0
                altL += add64(sB, src, int(kv[1])*16384)
            else:
                altL += [valu(f"v_mov_b32 v{vPat+j},0", [], V(vPat+j)) for j in range(4)]
                altL += add64(sB, sK0, 0)
            norm = add64(sB, sWQ, 256 + ch*64*8192)
            L += alt_anchor(p, f"Aalt{c}", f"s_cmp_eq_u32 s{sPass},3", S(sPass), S(sB,2)+V(vPat,4)+V(255), altL,
                            skip=[I(x.txt, "salu", rd=x.rd, wr=x.wr, anchor=True) for x in norm])
            item = lambda ctx, ch=ch: ("wq", ctx["pass"]+1, ch) if ctx["pass"] < 3 else [("K",0),("K",1),("V",0),("K",2),("V",1),("K",3),("V",2),("dummy",)][ch]
        else:
            altL = []
            if c == 1:
                altL += [valu(f"v_mov_b32 v{vPat+j},0", [], V(vPat+j)) for j in range(4)]
            altL += add64(sB, sWO, 0)
            norm = add64(sB, sWO, 256 + ch*64*1024)
            L += alt_anchor(p, f"Calt{c}", f"s_cmp_eq_u32 s{sPass},3", S(sPass), S(sB,2)+V(vPat,4), altL,
                            skip=[I(x.txt, "salu", rd=x.rd, wr=x.wr, anchor=True) for x in norm])
            item = lambda ctx, ch=ch: ("wo", ctx["pass"]+1, ch) if ctx["pass"] < 3 else ("dummy",)
        L += dma_item_static(w, ch & 7, vPat, sB, item=item)
        return L
    def bar_for(c):
        if phase == "A":
            need = lambda ctx, c=c: [("wq", ctx["pass"], c)] if c < 8 else ([("wq", ctx["pass"]+1, 0)] if ctx["pass"] < 3 else [("K",0)])
        else:
            need = lambda ctx, c=c: [("wo", ctx["pass"], c)] if c < 8 else ([("wo", ctx["pass"]+1, 0)] if ctx["pass"] < 3 else [])
        b = barrier(vm=24, needs=need)
        if pass0:
            if c <= 7:
                N0 = P0N[c]
                return barrier(vm=N0, needs=lambda ctx, c=c: [("wq", 0, c), ("x", c)])
            return b
        if False:
            N0 = 66 - 6*c
            wait_alt = [I(f"s_waitcnt vmcnt({N0}) lgkmcnt(0)", "wait", lgkm=0, vm=N0, needs=lambda ctx, c=c: [("wq", 0, c), ("x", c)])]
            g = alt_anchor(p, f"P0w{c}", f"s_cmp_eq_u32 s{sPass},0", S(sPass), ["LDSF", "DSORD"], wait_alt, skip=[b[0]])
            return g + [b[1]]
        return b
    for c in range(8):
        slot = c
        if c > 0: R += proj_mfmas(w, 3, 1, c-1 == 0, Bf(c-1), B13f(c-1))
        R += proj_reads(kind, slot, 1, 1)
        R += proj_mfmas(w, 0, 0, c == 0, Bf(c), B13f(c))
        R += proj_reads(kind, slot, 2, 0)
        R += proj_mfmas(w, 1, 1, c == 0, Bf(c), B13f(c))
        R += proj_reads(kind, slot, 3, 1)
        R += proj_mfmas(w, 2, 0, c == 0, Bf(c), B13f(c))
        R += bar_for(c+1)
        nslot = (c+1) & 7
        if (c+1) & 3 == 0:
            d = 4*SL if c+1 == 4 else -4*SL
            R.append(valu(f"v_add_u32 v{vAX},{d & 0xffffffff},v{vAX}", V(vAX), V(vAX)))
        rr_ = proj_reads(kind, nslot, 0, 0)
        R += need_end(rr_) if c == 7 else rr_
        rr_ = b13_reads((c+1) & 7)
        R += need_end(rr_) if c == 7 else rr_
        R += dma_for(c+1)
        if phase == "A":
            if pass0 and c+1 in (6, 7): R += prefetch_ops(w, c+1 == 7)
            if not pass0 and c+1 in (1, 4): R += prefetch_ops(w, c+1 == 4)
    R += proj_mfmas(w, 3, 1, False, Bf(7), B13f(7))
    return R, b13_reads, Bf

def p0_counts():
    ops = ["x13"]*4 + ["wq0"]*4 + ["x0"]*6 + ["wq1"]*4 + ["x1"]*6
    N = {}
    def need(c):
        idx = max(i for i, o in enumerate(ops) if o in (f"wq{c}", f"x{c}"))
        return min(63, len(ops)-1-idx)
    N[0] = need(0)
    for c in range(0, 8):
        if c+2 <= 6: ops += [f"wq{c+2}"]*4
        if c+2 <= 7: ops += [f"x{c+2}"]*6
        ops += [f"wq{c+7}"]*4
        if PREFETCH and c in (6, 7): ops += ["pf"]
        if c+1 <= 7: N[c+1] = need(c+1)
    return N
P0N = p0_counts()
def swap_frag(r):
    return [perm32(r, r+2), perm32(r+1, r+3), perm16(r, r+2), perm16(r+1, r+3)]
def pack_pair(dst, a, b):
    return [vcvt(dst, a, a+1), vcvt(dst+1, a+2, a+3), vcvt(dst+2, b, b+1), vcvt(dst+3, b+2, b+3)]

def epiA_common(w):
    L = []
    ss = f"s{sScale}"
    for s in range(4):
        for qt in range(3):
            a, b = acc(2*s, qt), acc(2*s+1, qt)
            L += [vmul_s(a+r, ss) for r in range(4)] + [vmul_s(b+r, ss) for r in range(4)]
            L += pack_pair(a, a, b) + swap_frag(a)
    a, b = acc13(0), acc13(1)
    L += [vmul_s(a+r, ss) for r in range(4)] + [vmul_s(b+r, ss) for r in range(4)]
    L += pack_pair(a, a, b) + swap_frag(a)
    return L
def epiA_head(w, h):
    L = [ds_w128(vAL, acc13(0), OFF_Q13[h] + 1024*w)]
    for s in range(4):
        for qt in range(3):
            a = acc(2*s, qt)
            for r in range(4):
                if h < 3:
                    d = QT + 48*h + 12*s + 4*qt + r
                    L.append(valu(f"v_mov_b32 v{d},v{a+r}", V(a+r), V(d)))
                else:
                    L.append(accw(T(3, s, qt)+r, a+r))
    if h == 3:
        for hh in range(3):
            for i in range(48): L.append(accw(48*hh+i, QT+48*hh+i))
    return L

def Sreg(sset, t): return SREG + 16*sset + 4*t
def Preg(pset, qt, p): return PREG + 24*pset + 8*qt + 4*p
def Qf(qt, s): return T(0, s, qt)
def Q13f(s): return B13 + 4*s
def need_end(L):
    for i in L: i.meta["need_end"] = True
    return L
def k_reads(kt, sg):
    return [ds_r128(pool(sg, s), vAK, kt*256 + s*64) for s in range(4)]
def v_reads(pair, sg):
    L = []
    for dtl in range(2):
        dt = 2*pair + dtl
        for p in range(2):
            for e in range(2):
                L.append(ds_tr(pool(sg, 2*dtl+p) + 2*e, vAX, (2*p+e)*256 + dt*32))
    return L
def qk_block(w, kt, sg, sset, with13, cinit=True):
    L = []
    tiles = [0, 1, 2] + ([3] if with13 else [])
    for t in tiles:
        for s in range(4):
            Bop = Qf(t, s) if t < 3 else Q13f(s)
            C = None if s else (('v', CREG + 4*t) if cinit else 0)
            L.append(mfma(('v', Sreg(sset, t)), ('a', pool(sg, s)), ('a', Bop), C))
    return L
def softmax_block(w, kt, sset, pset, with13, p13par):
    L = []
    tiles = ([3] if with13 else []) + [0, 1, 2]
    for t in tiles:
        r = Sreg(sset, t)
        L += [vexp(r+i) for i in range(4)]
        if t < 3:
            d = Preg(pset, t, kt >> 1) + 2*(kt & 1)
            L += [vcvt(d, r, r+1), vcvt(d+1, r+2, r+3)]
        else:
            L += [vcvt(r, r, r+1), vcvt(r+1, r+2, r+3)]
            L.append(ds_w64(vAL, r, OFF_P13 + 2048*p13par + 1024*(kt >> 1) + 8*(kt & 1)))
    return L
def pv_block(w, pair, sg, pset, first):
    L = []
    for dtl in range(2):
        dt = 2*pair + dtl
        for qt in range(3):
            for p in range(2):
                L.append(mfma(('v', acc(dt, qt)), ('a', pool(sg, 2*dtl+p)), ('v', Preg(pset, qt, p)), 0 if (first and p == 0) else None))
        if pair == w:
            for p in range(2):
                L.append(mfma(('v', acc13(dtl)), ('a', pool(sg, 2*dtl+p)), ('a', P13+4*p), 0 if (first and p == 0) else None))
    return L
def sum_block(pset, first):
    L = []
    for t in range(4):
        for p in range(2):
            Bop = ('v', Preg(pset, t, p)) if t < 3 else ('a', P13+4*p)
            L.append(mfma(('v', LACC+4*t), ('a', ONES), Bop, 0 if (first and p == 0) else None))
    return L
def p13_reads(par):
    return [ds_r128(P13+4*p, vAL, OFF_P13 + 2048*par + 1024*p) for p in range(2)]

def att_tail_dma(p, par, name):
    w = p.w
    sKold = sKa if ((par+1) & 1) == 0 else sKb
    sKnew = sKa if (par & 1) == 0 else sKb
    sVold = sVa if par == 0 else sVb
    sVnew = sVb if par == 0 else sVa
    L = []
    L.append(valu(f"v_add_u32 v{vAK},s{sKnew},v{vK0}", S(sKnew)+V(vK0), V(vAK)))
    L.append(valu(f"v_add_u32 v{vAX},s{sVnew},v{vV0}", S(sVnew)+V(vV0), V(vAX)))
    altK = []
    altK += [valu(f"v_subrev_u32 v255,{R1},v{vAL}", V(vAL), V(255)),
             valu(f"v_and_b32 v{vPat},0xf0,v255", V(255), V(vPat)),
             valu(f"v_lshrrev_b32 v255,8,v255", V(255), V(255)),
             valu(f"v_lshl_add_u32 v{vPat},v255,14,v{vPat}", V(255)+V(vPat), V(vPat))]
    altK += [valu(f"v_add_u32 v{vPat+j},{j*PAT_WO[1]},v{vPat}", V(vPat), V(vPat+j)) for j in range(1, 4)]
    altK += [salu(f"s_mul_hi_u32 s{sT0},s{sKold},{(1<<32)//SL+1}", S(sKold), S(sT0)),
             salu(f"s_lshl_b32 s{sT0},s{sT0},16", S(sT0), S(sT0))] + add64s(sB, sWO, sT0)
    altV = []
    altV += [valu(f"v_subrev_u32 v255,{R1},v{vAL}", V(vAL), V(255)),
             valu(f"v_and_b32 v{vPatV},0xf0,v255", V(255), V(vPatV)),
             valu(f"v_lshrrev_b32 v255,8,v255", V(255), V(255)),
             valu(f"v_lshl_add_u32 v{vPatV},v255,14,v{vPatV}", V(255)+V(vPatV), V(vPatV))]
    altV += [valu(f"v_add_u32 v{vPatV+j},{j*PAT_WO[1]},v{vPatV}", V(vPatV), V(vPatV+j)) for j in range(1, 4)]
    altV += [salu(f"s_mul_hi_u32 s{sT0},s{sVold},{(1<<32)//SL+1}", S(sVold), S(sT0)),
             salu(f"s_lshl_b32 s{sT0},s{sT0},16", S(sT0), S(sT0))] + add64s(sVB, sWO, sT0)
    altV_guard = [I(f"s_cmp_ge_u32 s{sCnt},29\ns_cbranch_scc0 {p.lbl(name+'K_r')}", "branch")]
    L = alt_anchor(p, name+"K", f"s_cmp_ge_u32 s{sCnt},28", S(sCnt)+S(sKold)+S(sVold)+S(sWO,2),
                   S(sB,2)+V(vPat,4)+V(255)+S(sT0)+S(sVB,2)+V(vPatV,4), altK + altV_guard + altV) + L
    itemK = lambda ctx: ("K", ctx["nb"]+4) if ctx["nb"]+4 <= 31 else ("wo", 0, [0,1,3,5][(ctx["nb"]+4) & 3])
    L += dma_item_dyn(w, sKold, vPat, 4, sB, item=itemK)
    L += add64(sB, sB, 16384)
    itemV = lambda ctx: ("V", ctx["nb"]+3) if ctx["nb"]+3 <= 31 else ("wo", 0, [2,4,6,7][(ctx["nb"]+3) & 3])
    L += dma_item_dyn(w, sVold, vPatV, 4, sVB, item=itemV)
    L += add64(sVB, sVB, 16384)
    kc = 3*SL if sKold == sKa else 6*SL
    vc = 8*SL if sVold == sVa else 11*SL
    L.append(salu(f"s_sub_u32 s{sKold},{kc},s{sKold}", S(sKold), S(sKold)))
    L.append(salu(f"s_sub_u32 s{sVold},{vc},s{sVold}", S(sVold), S(sVold)))
    L.append(salu(f"s_add_u32 s{sCnt},s{sCnt},1", S(sCnt), S(sCnt)))
    return L

def att_bar():
    need = lambda ctx: [x for x in (("K", ctx["nb"]+1) if ctx["nb"]+1 <= 31 else None, ("V", ctx["nb"])) if x]
    b = barrier(vm=16, needs=need)
    b[0].meta["isattbar"] = True
    return b

def att_pro(p):
    w = p.w
    R = []
    R += k_reads(0, 1)
    R += qk_block(w, 0, 1, 1, True, cinit=False)
    kt0 = w & 3
    R += k_reads(kt0, 0)
    for t in range(4):
        r = Sreg(1, t); c = CREG + 4*t
        R.append(valu(f"v_max3_f32 v{c},v{r},v{r+1},v{r+2}", V(r,3), V(c)))
        R.append(valu(f"v_max_f32 v{c},v{c},v{r+3}", V(c)+V(r+3), V(c)))
        R.append(valu(f"v_mov_b32 v{c+1},v{c}", V(c), V(c+1)))
        R.append(perm16(c, c+1))
        R.append(valu(f"v_max_f32 v{c},v{c},v{c+1}", V(c,2), V(c)))
        R.append(valu(f"v_mov_b32 v{c+1},v{c}", V(c), V(c+1)))
        R.append(perm32(c, c+1))
        R.append(valu(f"v_max_f32 v{c},v{c},v{c+1}", V(c,2), V(c)))
        R.append(valu(f"v_mul_f32 v{c},-1.0,v{c}", V(c), V(c)))
        for i in range(1, 4): R.append(valu(f"v_mov_b32 v{c+i},v{c}", V(c), V(c+i)))
    for j in range(4):
        kt = (w + j) & 3
        if j < 3: R += k_reads((w+j+1) & 3, (j+1) & 1)
        R += qk_block(w, kt, j & 1, j & 1, j == 0)
        R += softmax_block(w, kt, j & 1, 0, j == 0, 0)
    R += att_bar()
    R += att_tail_dma(p, 1, "Pro")
    R += need_end(k_reads(w & 3, 0))
    return R

def att_iter(p, par, first, name):
    w = p.w
    R = []
    R += p13_reads(par)
    for j in range(4):
        kt = (w + j) & 3
        pair = (w + 1 + j) & 3
        R += v_reads(pair, 1)
        R += qk_block(w, kt, 0, j & 1, j == 0)
        if j < 3: R += k_reads((w+j+1) & 3, 0)
        R += softmax_block(w, kt, j & 1, par ^ 1, j == 0, par ^ 1)
        if j == 3:
            R += att_bar()
            R += att_tail_dma(p, par, name)
            R += need_end(k_reads(w & 3, 0))
        R += pv_block(w, pair, 1, par, first)
    R += sum_block(par, first)
    return R

def att_last(p):
    w = p.w; par = 1
    R = []
    R += p13_reads(par)
    R += v_reads((w+1) & 3, 1)
    for j in range(4):
        pair = (w + 1 + j) & 3
        sg = (j + 1) & 1
        if j < 3: R += v_reads((w+2+j) & 3, j & 1)
        R += pv_block(w, pair, sg, par, False)
    R += sum_block(par, False)
    return R

def epiB_common(p):
    L = []
    rl = vT
    for t in range(4):
        L.append(valu(f"v_rcp_f32 v{rl+t},v{LACC+4*t}", V(LACC+4*t), V(rl+t), kind="trans"))
    for s in range(4):
        for qt in range(3):
            a, b = acc(2*s, qt), acc(2*s+1, qt)
            L += [vmul_s(a+r, f"v{rl+qt}") for r in range(4)] + [vmul_s(b+r, f"v{rl+qt}") for r in range(4)]
            L += pack_pair(a, a, b)
    a, b = acc13(0), acc13(1)
    L += [vmul_s(a+r, f"v{rl+3}") for r in range(4)] + [vmul_s(b+r, f"v{rl+3}") for r in range(4)]
    L += pack_pair(a, a, b)
    return L
def epiB_head(w, h):
    L = [ds_w128(vAL, acc13(0), OFF_Q13[h] + 1024*w)]
    dst = (h+1) & 3
    if h < 3:
        for i in range(48): L.append(accm(i, 48*dst+i))
    for s in range(4):
        for qt in range(3):
            for r in range(4): L.append(accw(T(dst, s, qt)+r, acc(2*s, qt)+r))
    return L
def q13_reads(h):
    return [ds_r128(Q13f(s), vAL, OFF_Q13[h] + 1024*s) for s in range(4)]

def epiC(w):
    L = []
    for qt in range(3):
        Tq = 3*w + qt
        L += add64(sST, sWS, Tq*4096)
        for u in range(4):
            a, b = acc(2*u, qt), acc(2*u+1, qt)
            L += pack_pair(a, a, b)
            L.append(I(f"global_store_dwordx4 v{vAL},v[{a}:{a+3}],s[{sST}:{sST+1}] offset:{u*1024}", "vmem",
                       rd=V(vAL)+V(a,4)+S(sST,2)+["VMORD"], wr=["VMORD"], store=True, item=lambda ctx: ("st",)))
    L += add64(sST, sWS, 12*4096)
    a, b = acc13(0), acc13(1)
    L += pack_pair(a, a, b)
    L.append(I(f"global_store_dwordx4 v{vAL},v[{a}:{a+3}],s[{sST}:{sST+1}] offset:{w*1024}", "vmem",
               rd=V(vAL)+V(a,4)+S(sST,2)+["VMORD"], wr=["VMORD"], store=True, item=lambda ctx: ("st",)))
    return L

def wave_program(w):
    p = Prog(w)
    if PROFILE:
        p.add([salu("s_mov_b32 s62,0", [], S(62)), valu("v_accvgpr_write_b32 a252,0", [], A(252))])
        p.stamp()
    P = []
    a = lambda t, rd=(), wr=(): P.append(salu(t, rd, wr))
    a(f"s_and_b32 s{sT0},s2,7", ["s2"], S(sT0))
    a(f"s_lshr_b32 s{sT1},s2,3", ["s2"], S(sT1))
    a(f"s_lshr_b32 s{sT2},s{sT1},3", S(sT1), S(sT2))
    a(f"s_lshl_b32 s{sT0},s{sT0},2", S(sT0), S(sT0))
    a(f"s_add_u32 s{sT0},s{sT0},s{sT2}", S(sT0)+S(sT2), S(sT0))
    a(f"s_and_b32 s{sT1},s{sT1},7", S(sT1), S(sT1))
    a(f"s_mul_i32 s{sT2},s{sT0},212992", S(sT0), S(sT2)); P += add64s(sX, sX, sT2)
    a(f"s_lshl_b32 s{sT2},s{sT0},22", S(sT0), S(sT2))
    a(f"s_lshl_b32 s{sT3},s{sT1},19", S(sT1), S(sT3))
    a(f"s_add_u32 s{sT2},s{sT2},s{sT3}", S(sT2)+S(sT3), S(sT2))
    a(f"s_add_u32 s{sT2},s{sT2},{4*w*256}", S(sT2), S(sT2))
    P += add64s(sK0, sK0, sT2); P += add64s(sV0, sV0, sT2)
    rowoff = 4*(w >> 1) + 8*(w & 1)
    a(f"s_lshl_b32 s{sT2},s{sT1},10", S(sT1), S(sT2))
    a(f"s_add_u32 s{sT2},s{sT2},{rowoff*8192}", S(sT2), S(sT2))
    P += add64s(sWQ, sWQ, sT2)
    a(f"s_add_u32 s{sT2},s{sT3},{4*w*1024}", S(sT3), S(sT2))
    P += add64s(sWO, sWO, sT2)
    a(f"s_lshl_b32 s{sT2},s{sT0},3", S(sT0), S(sT2))
    a(f"s_add_u32 s{sT2},s{sT2},s{sT1}", S(sT2)+S(sT1), S(sT2))
    a(f"s_mul_i32 s{sT2},s{sT2},212992", S(sT2), S(sT2))
    P += add64s(sWS, sWS, sT2)
    a(f"s_sub_u32 s{sWS},s{sWS},{R1}", S(sWS), S(sWS))
    a(f"s_subb_u32 s{sWS+1},s{sWS+1},0", S(sWS+1), S(sWS+1))
    a(f"s_mov_b32 s{sScale},{f2u(SCALE):#x}", [], S(sScale))
    a(f"s_mov_b32 s{sThr},{f2u(2.0**40):#x}", [], S(sThr))
    a(f"s_mov_b32 s{sPass},0", [], S(sPass))
    P += lane_consts(w)
    P += calc_aW(vAX, 255, 0, 1)
    P += calc_pat(vPat, 255, 0, 1, *PAT_WQ)
    P += [valu("v_and_b32 v2,15,v255", V(255), V(2)), valu("v_lshlrev_b32 v2,10,v2", V(2), V(2)),
          valu("v_lshrrev_b32 v3,4,v255", V(255), V(3)), valu("v_lshl_add_u32 v2,v3,4,v2", V(2)+V(3), V(2))]
    for i in range(4): P.append(I(f"v_accvgpr_write_b32 a{ONES+i},s{sT3}", "valu", rd=S(sT3), wr=A(ONES+i)))
    P.insert(len(P)-4, salu(f"s_mov_b32 s{sT3},0x3f803f80", [], S(sT3)))
    P.append(valu("v_mov_b32 v254,v2", V(2), V(254)))
    for qt in range(3): P += add64(XB[qt], sX, (48*w + 16*qt)*1024)
    P += add64(XB[3], sX, 192*1024)
    for i in range(4):
        P.append(I(f"global_load_dwordx4 v[{8+4*i}:{11+4*i}],v254,s[{XB[3]}:{XB[3]+1}] offset:{(4*w+i)*64}", "vmem",
                   rd=V(254)+S(XB[3],2)+["VMORD"], wr=V(8+4*i,4)+["VMORD"], item=lambda ctx: ("x13",)))
    def item_wq(c):
        return add64(sB, sWQ, c*64*8192) + dma_item_static(w, c, vPat, sB, item=lambda ctx, c=c: ("wq", 0, c))
    for c in range(2): P += item_wq(c) + xload_ops(w, c)
    P.append(I("s_waitcnt vmcnt(20)", "wait", vm=20))
    for i in range(4): P.append(ds_w128(vAL, 8+4*i, 1024*(4*w+i)))
    p.add(P); p.stamp(); P = []
    P += barrier(vm=P0N[0], needs=lambda ctx: [("wq", 0, 0), ("x", 0)])
    body0, b13A, _ = pass_body(p, "A", pass0=True)
    bodyA, b13A, _ = pass_body(p, "A")
    P += proj_reads("W", 0, 0, 0) + b13A(0)
    P += item_wq(2) + xload_ops(w, 2) + item_wq(7)
    p.add(P)
    p.add([I("LG 0", "wait", lgkm=0)])
    p.stamp()
    p.add(body0 + epiA_common(w), sched=True)
    p.add(epiA_head(w, 0))
    p.add(add64(sWQ, sWQ, 256) + [salu(f"s_add_u32 s{sPass},s{sPass},1", S(sPass), S(sPass))])
    p.label("LA")
    p.add([I("LG 0", "wait", lgkm=0)])
    p.stamp()
    p.add(bodyA + epiA_common(w), sched=True)
    for h in range(1, 4):
        if h < 3:
            p.add([salu(f"s_cmp_eq_u32 s{sPass},{h}", S(sPass), ["scc"]), I(f"s_cbranch_scc0 {p.lbl('EA%d'%(h+1))}", "branch", rd=["scc"])])
        p.add(epiA_head(w, h))
        if h < 3:
            p.add(add64(sWQ, sWQ, 256) + [salu(f"s_add_u32 s{sPass},s{sPass},1", S(sPass), S(sPass)),
                   I(f"s_branch {p.lbl('LA')}", "branch")])
            p.label(f"EA{h+1}")
    p.stamp()
    P = []
    P += lane_from_AL(vT)
    P += calc_aK(vK0, vT, vT+1, vT+2)
    P += calc_aV(vV0, vT, vT+1, vT+2)
    P += calc_pat(vPat, vT, vT+1, vT+2, *PAT_KV)
    P += [valu(f"v_mov_b32 v{vPatV+j},v{vPat}", V(vPat), V(vPatV+j)) for j in range(4)]
    P += [salu(f"s_mov_b32 s{sKa},0", [], S(sKa)), salu(f"s_mov_b32 s{sKb},{SL}", [], S(sKb)),
          salu(f"s_mov_b32 s{sVa},{2*SL}", [], S(sVa)), salu(f"s_mov_b32 s{sVb},{7*SL}", [], S(sVb)),
          salu(f"s_mov_b32 s{sCnt},0", [], S(sCnt)), salu(f"s_mov_b32 s{sHead},0", [], S(sHead))]
    P += add64(sB, sK0, 4*16384) + add64(sVB, sV0, 3*16384)
    P += barrier(vm=None)
    p.add(P)
    p.label("LB")
    for h in range(4):
        if h < 3:
            p.add([salu(f"s_cmp_eq_u32 s{sHead},{h}", S(sHead), ["scc"]), I(f"s_cbranch_scc0 {p.lbl('QB%d'%(h+1))}", "branch", rd=["scc"])])
        p.add(q13_reads(h))
        if h < 3:
            p.add([I(f"s_branch {p.lbl('QBX')}", "branch")]); p.label(f"QB{h+1}")
    p.label("QBX")
    p.add([I("LG 0", "wait", lgkm=0),
           valu(f"v_mov_b32 v{vAK},v{vK0}", V(vK0), V(vAK))])
    p.stamp()
    p.add(att_pro(p), sched=True)
    p.add([I("LG 0", "wait", lgkm=0)])
    p.stamp()
    p.add(att_iter(p, 0, True, "It0"), sched=True)
    p.add([salu(f"s_mov_b32 s{sPass},3", [], S(sPass))])
    p.stamp()
    p.label("LI")
    p.add([I("LG 0", "wait", lgkm=0)])
    p.add(att_iter(p, 1, False, "ItO"), sched=True)
    p.add([I("LG 0", "wait", lgkm=0)])
    p.add(att_iter(p, 0, False, "ItE"), sched=True)
    p.add([salu(f"s_sub_u32 s{sPass},s{sPass},1", S(sPass), S(sPass)),
           salu(f"s_cmp_lg_u32 s{sPass},0", S(sPass), ["scc"]), I(f"s_cbranch_scc1 {p.lbl('LI')}", "branch", rd=["scc"])])
    p.add([I("LG 0", "wait", lgkm=0)])
    p.stamp()
    p.add(att_last(p) + epiB_common(p), sched=True)
    p.stamp()
    for h in range(4):
        if h < 3:
            p.add([salu(f"s_cmp_eq_u32 s{sHead},{h}", S(sHead), ["scc"]), I(f"s_cbranch_scc0 {p.lbl('EB%d'%(h+1))}", "branch", rd=["scc"])])
        p.add(epiB_head(w, h))
        if h < 3:
            p.add([salu(f"s_add_u32 s{sHead},s{sHead},1", S(sHead), S(sHead)), I(f"s_branch {p.lbl('LB')}", "branch")])
            p.label(f"EB{h+1}")
    P = []
    P += [valu(f"v_mov_b32 v{vAX},v{vV0}", V(vV0), V(vAX)), salu(f"s_mov_b32 s{sPass},0", [], S(sPass))]
    P += barrier(vm=24, needs=lambda ctx: [("wo", 0, 0)])
    bodyC, b13C, _ = pass_body(p, "C")
    P += proj_reads("V", 0, 0, 0) + b13C(0)
    P += add64(sB, sWO, 7*64*1024) + dma_item_static(w, 7, vPat, sB, item=lambda ctx: ("wo", 0, 7))
    p.add(P)
    p.add([salu(f"s_mov_b64 s[{sMask}:{sMask+1}],0", [], S(sMask,2))])
    p.label("LC")
    p.add([I("LG 0", "wait", lgkm=0)])
    p.stamp()
    p.add(epiC_stores(w, True, True) + bodyC + epiC_cvt(w), sched=True)
    p.stamp()
    p.add(add64(sWO, sWO, 256) +
          [salu(f"s_cmp_eq_u32 s{sPass},0\ns_cselect_b32 s{sT0},0,53248", S(sPass), S(sT0))] + add64s(sWS, sWS, sT0) +
          [salu(f"s_mov_b64 s[{sMask}:{sMask+1}],-1", [], S(sMask,2)),
           salu(f"s_add_u32 s{sPass},s{sPass},1", S(sPass), S(sPass)),
           salu(f"s_cmp_lg_u32 s{sPass},4", S(sPass), ["scc"]), I(f"s_cbranch_scc1 {p.lbl('LC')}", "branch", rd=["scc"])])
    p.add(epiC_stores(w, False, False))
    p.stamp()
    p.add([I("s_waitcnt vmcnt(0) lgkmcnt(0)", "wait", lgkm=0, vm=0)])
    p.stamp()
    p.stamp_flush()
    p.add([I("s_waitcnt vmcnt(0) lgkmcnt(0)", "wait", lgkm=0, vm=0), I("s_endpgm", "end")])
    return p

HEADER = open("standalone__mha_block_cached__near_ridge.s.ref").read().split("; Override launch")[0]

def kd(name, vgpr, accum, sgpr=96):
    return f""".section .rodata,"a"
.p2align 6
.amdhsa_kernel {name}
  .amdhsa_next_free_vgpr {vgpr}
  .amdhsa_next_free_sgpr {sgpr}
  .amdhsa_accum_offset {accum}
  .amdhsa_group_segment_fixed_size 0
  .amdhsa_kernarg_size 64
  .amdhsa_user_sgpr_count 2
  .amdhsa_user_sgpr_kernarg_segment_ptr 1
  .amdhsa_system_sgpr_workgroup_id_x 1
  .amdhsa_float_denorm_mode_32 3
.end_amdhsa_kernel
"""

def reduce_kernel():
    n = "mha_reduce_kernel"
    L = []
    a = L.append
    a(f".text\n.globl {n}\n.p2align 8\n.type {n},@function\n{n}:")
    a("s_cmp_ge_u32 s2,1664"); a("s_cbranch_scc1 RED_END")
    a("s_load_dwordx2 s[4:5],s[0:1],56"); a("s_load_dwordx2 s[6:7],s[0:1],40")
    a("v_lshrrev_b32 v1,6,v0"); a("s_nop 0"); a("v_readfirstlane_b32 s8,v1")
    a("s_lshl_b32 s9,s2,2"); a("s_nop 2"); a("s_add_u32 s8,s8,s9")
    a(f"s_mul_hi_u32 s10,s8,{(1<<32)//208+1}")
    a("s_mul_i32 s11,s10,208"); a("s_sub_u32 s11,s8,s11")
    a(f"s_mul_hi_u32 s12,s11,{(1<<32)//52+1}")
    a("s_mul_i32 s13,s12,52"); a("s_sub_u32 s13,s11,s13")
    a("s_mul_i32 s14,s10,1703936"); a("s_mul_i32 s15,s12,53248"); a("s_add_u32 s14,s14,s15")
    a("s_lshl_b32 s15,s13,10"); a("s_add_u32 s14,s14,s15")
    a("v_and_b32 v2,63,v0"); a("v_lshlrev_b32 v3,4,v2")
    a("s_waitcnt lgkmcnt(0)")
    a("s_add_u32 s4,s4,s14"); a("s_addc_u32 s5,s5,0")
    for g in range(8):
        a(f"global_load_dwordx4 v[{8+4*g}:{11+4*g}],v3,s[4:5]")
        if g < 7: a("s_add_u32 s4,s4,212992"); a("s_addc_u32 s5,s5,0")
    a("s_lshr_b32 s16,s13,2"); a("s_and_b32 s17,s13,3")
    a("s_mul_i32 s18,s10,208"); a("s_lshl_b32 s16,s16,4"); a("s_add_u32 s18,s18,s16"); a("s_lshl_b32 s18,s18,10")
    a("s_lshl_b32 s19,s12,8"); a("s_add_u32 s18,s18,s19"); a("s_lshl_b32 s19,s17,6"); a("s_add_u32 s18,s18,s19")
    a("s_add_u32 s6,s6,s18"); a("s_addc_u32 s7,s7,0")
    a("v_and_b32 v4,15,v2"); a("v_lshlrev_b32 v4,10,v4"); a("v_lshrrev_b32 v5,4,v2"); a("v_lshl_add_u32 v4,v5,4,v4")
    a("s_mov_b32 s20,0xffff0000")
    for g in range(8):
        a(f"s_waitcnt vmcnt({7-g})")
        for i in range(4):
            r = 8+4*g+i
            if g == 0:
                a(f"v_lshlrev_b32 v{48+2*i},16,v{r}"); a(f"v_and_b32 v{49+2*i},s20,v{r}")
            else:
                a(f"v_lshlrev_b32 v6,16,v{r}"); a(f"v_and_b32 v7,s20,v{r}")
                a(f"v_add_f32 v{48+2*i},v{48+2*i},v6"); a(f"v_add_f32 v{49+2*i},v{49+2*i},v7")
    for i in range(4): a(f"v_cvt_pk_bf16_f32 v{56+i},v{48+2*i},v{49+2*i}")
    a("s_nop 1")
    a("v_permlane32_swap_b32 v56,v58"); a("v_permlane32_swap_b32 v57,v59"); a("s_nop 1")
    a("v_permlane16_swap_b32 v56,v58"); a("v_permlane16_swap_b32 v57,v59"); a("s_nop 1")
    a("global_store_dwordx4 v4,v[56:59],s[6:7]")
    a("RED_END:"); a("s_endpgm")
    return "\n".join(L) + "\n" + kd(n, 64, 64, 32)

def main():
    n = "mha_main_kernel"
    progs = [wave_program(w) for w in range(4)]
    out = [HEADER.rstrip("\n")]
    out.append(f"; @launch kernel={n} grid=(256,1,1) block=(256,1,1) lds={LDS_BYTES}")
    out.append(f"; @launch kernel=mha_reduce_kernel grid=(1664,1,1) block=(256,1,1) lds=0")
    out.append('.amdgcn_target "amdgcn-amd-amdhsa--gfx950"')
    out.append(MACROS)
    out.append(f".text\n.globl {n}\n.p2align 8\n.type {n},@function\n{n}:")
    E = ["s_cmp_ge_u32 s2,256", "s_cbranch_scc0 GO", "s_endpgm", "GO:",
         "s_load_dwordx4 s[4:7],s[0:1],0", "s_load_dwordx4 s[8:11],s[0:1],16", "s_load_dwordx2 s[12:13],s[0:1],32",
         "s_load_dwordx2 s[14:15],s[0:1],56",
         "v_lshrrev_b32 v1,6,v0", "s_nop 0", "v_readfirstlane_b32 s28,v1", "s_waitcnt lgkmcnt(0)"]
    for w in range(1, 4):
        E += [f"s_cmp_eq_u32 s28,{w}", f"s_cbranch_scc0 NX{w}", "s_getpc_b64 s[30:31]", f"PC{w}:",
              f"s_add_u32 s30,s30,W{w}-PC{w}", "s_addc_u32 s31,s31,0", "s_setpc_b64 s[30:31]", f"NX{w}:"]
    out += E
    for w, p in enumerate(progs):
        out.append(".p2align 6"); out.append(f"W{w}:")
        out += [i.txt for i in p.main]
        out += [i.txt for i in p.ool]
    out.append(kd(n, 512, 256))
    out.append(reduce_kernel())
    txt = "\n".join(out) + "\n"
    return txt, progs

if __name__ == "__main__":
    txt, progs = main()
    dst = sys.argv[1] if len(sys.argv) > 1 else "standalone__mha_block_cached__near_ridge.s"
    open(dst, "w").write(txt)
    print("bytes", len(txt), "instrs/wave", [len(p.main)+len(p.ool) for p in progs])
```

```python
import re

def V(i, n=1): return [f"v{k}" for k in range(i, i+n)]
def A(i, n=1): return [f"a{k}" for k in range(i, i+n)]
def S(i, n=1): return [f"s{k}" for k in range(i, i+n)]
def rr(c, i, n):
    return f"{c}{i}" if n == 1 else f"{c}[{i}:{i+n-1}]"

class I:
    __slots__ = ("txt", "kind", "rd", "wr", "cost", "meta", "after_gap", "srcc", "dreg")
    def __init__(self, txt, kind, rd=(), wr=(), cost=None, **meta):
        self.txt = txt; self.kind = kind
        self.rd = list(rd); self.wr = list(wr)
        self.cost = cost if cost is not None else {"valu":4,"trans":8,"perm":4,"dsr":4,"dsw":4,"dma":4,"vmem":4,"salu":1,"mfma":8}.get(kind, 1)
        self.meta = meta
        self.srcc = meta.get("srcc", [])
        self.dreg = meta.get("dreg", None)
    def __repr__(self): return self.txt

def reg(cls, i, n): return (cls, i, n)
def regs(r): return [f"{r[0]}{k}" for k in range(r[1], r[1]+r[2])]
def rtxt(r): return rr(r[0], r[1], r[2])

def mfma(D, Aop, Bop, C):
    d = (D[0], D[1], 4); a = (Aop[0], Aop[1], 4); b = (Bop[0], Bop[1], 4)
    if C is None: c = d; ctxt = rtxt(d); crd = regs(d)
    elif C == 0: ctxt = "0"; crd = []
    else: c = (C[0], C[1], 4); ctxt = rtxt(c); crd = regs(c)
    key = (D[0], Aop[0], Bop[0])
    if D[0] == 'v' and Aop[0] == 'a':
        if C is None: txt = f"M{Bop[0]} {D[1]},{Aop[1]},{Bop[1]}"
        elif C == 0:  txt = f"Z{Bop[0]} {D[1]},{Aop[1]},{Bop[1]}"
        elif C[0] == 'v': txt = f"C{Bop[0]} {D[1]},{Aop[1]},{Bop[1]},{C[1]}"
        else: raise ValueError
    else:
        txt = f"v_mfma_f32_16x16x32_bf16 {rtxt(d)},{rtxt(a)},{rtxt(b)},{ctxt}"
    return I(txt, "mfma", rd=regs(a)+regs(b)+crd, wr=regs(d), srcc=crd, dreg=(d, C is None), ab=regs(a)+regs(b))

MACROS = r"""
.macro Ma d,a,b
v_mfma_f32_16x16x32_bf16 v[\d:\d+3],a[\a:\a+3],a[\b:\b+3],v[\d:\d+3]
.endm
.macro Mv d,a,b
v_mfma_f32_16x16x32_bf16 v[\d:\d+3],a[\a:\a+3],v[\b:\b+3],v[\d:\d+3]
.endm
.macro Za d,a,b
v_mfma_f32_16x16x32_bf16 v[\d:\d+3],a[\a:\a+3],a[\b:\b+3],0
.endm
.macro Zv d,a,b
v_mfma_f32_16x16x32_bf16 v[\d:\d+3],a[\a:\a+3],v[\b:\b+3],0
.endm
.macro Ca d,a,b,c
v_mfma_f32_16x16x32_bf16 v[\d:\d+3],a[\a:\a+3],a[\b:\b+3],v[\c:\c+3]
.endm
.macro Cv d,a,b,c
v_mfma_f32_16x16x32_bf16 v[\d:\d+3],a[\a:\a+3],v[\b:\b+3],v[\c:\c+3]
.endm
.macro TR d,r,o
ds_read_b64_tr_b16 a[\d:\d+1],v\r offset:\o
.endm
.macro RD d,r,o
ds_read_b128 a[\d:\d+3],v\r offset:\o
.endm
.macro EX d
v_exp_f32 v\d,v\d
.endm
.macro CV d,a,b
v_cvt_pk_bf16_f32 v\d,v\a,v\b
.endm
.macro DM p,s,o
global_load_lds_dwordx4 v\p,s[\s:\s+1] offset:\o nt
.endm
.macro AW d,s
v_accvgpr_write_b32 a\d,v\s
.endm
.macro AM d,s
v_accvgpr_mov_b32 a\d,a\s
.endm
.macro MU d,s
v_mul_f32 v\d,\s,v\d
.endm
.macro LG n
s_waitcnt lgkmcnt(\n)
.endm
"""

def ds_tr(da, vaddr, off, fence="LDSF"):
    assert 0 <= off < 65536, off
    return I(f"TR {da},{vaddr},{off}", "dsr", rd=[f"v{vaddr}", fence, "DSORD"], wr=A(da,2)+["DSORD"])
def ds_r128(da, vaddr, off, fence="LDSF"):
    assert 0 <= off < 65536, off
    return I(f"RD {da},{vaddr},{off}", "dsr", rd=[f"v{vaddr}", fence, "DSORD"], wr=A(da,4)+["DSORD"])
def ds_r128v(dv, vaddr, off, fence="LDSF"):
    assert 0 <= off < 65536, off
    return I(f"ds_read_b128 v[{dv}:{dv+3}],v{vaddr} offset:{off}", "dsr", rd=[f"v{vaddr}", fence, "DSORD"], wr=V(dv,4)+["DSORD"])
def ds_w128(vaddr, sv, off, fence="LDSF"):
    assert 0 <= off < 65536, off
    return I(f"ds_write_b128 v{vaddr},v[{sv}:{sv+3}] offset:{off}", "dsw", rd=[f"v{vaddr}", fence, "DSORD"]+V(sv,4), wr=["DSORD"])
def ds_w64(vaddr, sv, off, fence="LDSF"):
    assert 0 <= off < 65536, off
    return I(f"ds_write_b64 v{vaddr},v[{sv}:{sv+1}] offset:{off}", "dsw", rd=[f"v{vaddr}", fence, "DSORD"]+V(sv,2), wr=["DSORD"])
def dma(vpat, sbase, off, item=None):
    return I(f"DM {vpat},{sbase},{off}", "dma", rd=[f"v{vpat}", "m0", "LDSF", "VMORD"]+S(sbase,2), wr=["VMORD"], item=item, dl_rel=14)
def dma_next(vpat, sbase, off, m0next, item=None):
    i = dma(vpat, sbase, off, item)
    if m0next:
        i.txt += "\n" + m0next; i.wr = i.wr + ["m0"]; i.meta["fused_m0"] = True
    return i
def vexp(d): return I(f"EX {d}", "trans", rd=V(d), wr=V(d))
def vcvt(d, a, b): return I(f"CV {d},{a},{b}", "valu", rd=V(a)+V(b), wr=V(d))
def valu(txt, rd, wr, kind="valu"): return I(txt, kind, rd=rd, wr=wr)
def salu(txt, rd, wr): return I(txt, "salu", rd=rd, wr=wr)
def accw(da, sv): return I(f"AW {da},{sv}", "valu", rd=V(sv), wr=A(da))
def accm(da, sa): return I(f"AM {da},{sa}", "valu", rd=A(sa), wr=A(da))
def vmul_s(d, s): return I(f"MU {d},{s}", "valu", rd=V(d)+([s] if s.startswith('s') or s.startswith('v') else []), wr=V(d))
def perm32(a, b): return I(f"v_permlane32_swap_b32 v{a},v{b}", "perm", rd=V(a)+V(b), wr=V(a)+V(b))
def perm16(a, b): return I(f"v_permlane16_swap_b32 v{a},v{b}", "perm", rd=V(a)+V(b), wr=V(a)+V(b))
def barrier(vm=None, needs=None):
    w = "s_waitcnt " + (f"vmcnt({vm}) " if vm is not None else "") + "lgkmcnt(0)"
    return [I(w, "wait", rd=[], wr=["LDSF", "DSORD"], anchor=True, vm=vm, lgkm=0, needs=needs),
            I("s_barrier", "bar", rd=[], wr=["LDSF"], anchor=True)]
def raw(txt, kind="salu", rd=(), wr=(), **meta): return I(txt, kind, rd=rd, wr=wr, **meta)

def is_anchor(ins): return ins.kind == "mfma" or ins.meta.get("anchor", False)

def schedule(region, gapbudget=8, lat_ds=7, mfma_to_valu=4, maxsalu=2, window=6):
    n = len(region)
    preds = [set() for _ in range(n)]; succs = [set() for _ in range(n)]
    rawm = [set() for _ in range(n)]
    last_w = {}; readers = {}
    for i, ins in enumerate(region):
        for r in ins.rd:
            if r in last_w:
                preds[i].add(last_w[r])
                if region[last_w[r]].kind == "mfma" and ins.kind != "mfma": rawm[i].add(last_w[r])
        for r in ins.wr:
            if r in last_w:
                preds[i].add(last_w[r])
                if region[last_w[r]].kind == "mfma" and ins.kind != "mfma": rawm[i].add(last_w[r])
            for j in readers.get(r, ()):
                if j != i: preds[i].add(j)
        for r in ins.rd: readers.setdefault(r, []).append(i)
        for r in ins.wr: last_w[r] = i; readers[r] = []
    for i in range(n):
        preds[i].discard(i)
        for p in preds[i]: succs[p].add(i)
    anchors = [i for i in range(n) if is_anchor(region[i])]
    apos = {}; k = 0
    for i in anchors:
        apos[i] = k
        if region[i].kind == "mfma": k += 1
    nm = k
    ppos = [0]*n; k = 0
    for i in range(n):
        ppos[i] = k
        if region[i].kind == "mfma": k += 1
    dl = [None]*n
    for i in range(n-1, -1, -1):
        if i in apos: dl[i] = apos[i]; continue
        d = nm + 1000
        for s in succs[i]:
            ki, ks = region[i].kind, region[s].kind
            lat = 0
            if ki == "dsr" and any(r in region[s].rd for r in region[i].wr if r != "DSORD"): lat = lat_ds
            elif ki in ("dsr", "dsw") and ks in ("wait", "branch") and "LDSF" in region[s].wr: lat = lat_ds
            elif ki in ("trans","valu","perm") and ks == "mfma": lat = 1
            elif ki == "trans": lat = 1
            elif ki in ("valu","perm") and ks == "perm": lat = 1
            d = min(d, dl[s] - lat)
        if region[i].meta.get("need_end"): d = min(d, nm - lat_ds)
        if region[i].meta.get("dl_rel") is not None: d = min(d, ppos[i] + region[i].meta["dl_rel"])
        dl[i] = d + region[i].meta.get("dl_bias", 0)
    emitted = [False]*n; out = []; gap_of = [None]*n
    npend = [len(preds[i]) for i in range(n)]
    ready = set(i for i in range(n) if npend[i] == 0 and i not in apos)
    cur_gap = [0]
    def emit(i):
        emitted[i] = True; gap_of[i] = cur_gap[0]; out.append(region[i])
        ready.discard(i)
        for s in succs[i]:
            npend[s] -= 1
            if npend[s] == 0 and s not in apos: ready.add(s)
    def force(i):
        stack = sorted(p for p in preds[i] if not emitted[p])
        for p in stack:
            if emitted[p]: continue
            assert p not in apos, f"anchor pred not emitted: {region[p]} before {region[i]}"
            force(p); emit(p)
    def earliest_ok(i):
        for p in rawm[i]:
            if cur_gap[0] < apos[p] + mfma_to_valu: return False
        if region[i].kind == "dsr" and cur_gap[0] < dl[i] - window: return False
        if region[i].kind == "dma":
            for p in preds[i]:
                if "m0" in region[p].wr and gap_of[p] == cur_gap[0] and region[p].kind == "salu": return False
        mg = region[i].meta.get("min_gap")
        if mg is not None and cur_gap[0] < mg: return False
        mr = region[i].meta.get("min_rel")
        if mr is not None and cur_gap[0] < ppos[i] + mr: return False
        return True
    for a in anchors:
        force(a); emit(a)
        if region[a].kind != "mfma": continue
        cur_gap[0] = apos[a] + 1
        budget = gapbudget; nsalu = 0; nvm = 0; had_trans = False; lastk = None
        while True:
            cands = [i for i in ready if earliest_ok(i)]
            cands.sort(key=lambda i: (dl[i] if dl[i] < nm + 500 else nm + 500, i))
            pick = None
            if lastk is not None:
                isv = lambda k: k in ("valu", "perm")
                pref = [i for i in cands if region[i].kind not in ("salu", "trans") and isv(region[i].kind) != isv(lastk)]
                urgent = [i for i in cands if dl[i] <= cur_gap[0] + 1 and region[i].kind != "salu"]
                if pref and not urgent: cands = pref + [i for i in cands if i not in pref]
            for i in cands:
                ins = region[i]
                if ins.kind == "salu":
                    if nsalu < maxsalu: pick = i; break
                    continue
                if ins.kind in ("dma", "vmem") and nvm >= 1: continue
                if had_trans: continue
                if ins.cost <= budget: pick = i; break
            if pick is None: break
            ins = region[pick]
            if ins.kind == "salu": nsalu += 1
            else:
                budget -= ins.cost
                if ins.kind == "trans": had_trans = True
                if ins.kind in ("dma", "vmem"): nvm += 1
                lastk = ins.kind
            emit(pick)
    for i in range(n):
        if not emitted[i]:
            force(i); emit(i)
    return out

def insert_lgkm(seq, pend=None):
    out = []; pend = [] if pend is None else pend
    for ins in seq:
        if ins.kind == "wait" and ins.meta.get("lgkm") is not None:
            k = ins.meta["lgkm"]; pend = pend[len(pend)-k:] if k else []
            out.append(ins); continue
        touch = set(r for r in ins.rd + ins.wr if r[0] in "va" and r[1:].isdigit())
        need = -1
        for j, d in enumerate(pend):
            if d & touch: need = j
        if need >= 0:
            nleft = len(pend) - need - 1
            out.append(I(f"LG {nleft}", "wait", lgkm=nleft, auto=True))
            pend = pend[need+1:]
        if ins.kind in ("dsr", "dsw") and len(pend) >= 15:
            out.append(I("LG 14", "wait", lgkm=14, auto=True)); pend = pend[-14:]
        if ins.kind == "dsr":
            pend.append(set(r for r in ins.wr if r != "DSORD"))
        elif ins.kind == "dsw":
            pend.append(set())
        assert len(pend) <= 15, "lgkmcnt overflow"
        out.append(ins)
    return out, pend

def is_valu(k): return k in ("valu", "trans", "perm")
def need_states(P, C):
    pw = set(P.wr); pr = set(P.rd); cr = set(C.rd); cw = set(C.wr)
    reg = lambda s: set(r for r in s if r[0] in "va" and r[1:].isdigit())
    n = 0
    if is_valu(P.kind):
        if C.kind == "mfma" and reg(pw) & reg(cr): n = max(n, 2)
        if C.kind == "perm" and reg(pw) & reg(cr): n = max(n, 2)
        if P.kind == "trans" and C.kind in ("valu", "perm") and reg(pw) & reg(cr): n = max(n, 1)
        sw = set(r for r in pw if (r[0] == "s" and r[1:].isdigit()) or r == "vcc")
        if sw:
            if is_valu(C.kind) and sw & cr: n = max(n, 2)
            if C.kind in ("dma", "vmem") and sw & cr: n = max(n, 5)
            if C.kind in ("salu", "branch") and sw & cr: n = max(n, 1)
        if C.meta.get("readlane") and reg(pw) & reg(cr): n = max(n, 1)
    if P.kind == "mfma":
        D = reg(pw)
        if C.kind == "mfma":
            if D & set(C.meta["ab"]): n = max(n, 8)
            if D & set(C.srcc):
                same = C.dreg[1] and C.dreg[0] == P.dreg[0]
                if not same: n = max(n, 6)
            elif D & reg(cw):
                n = max(n, 6)
        elif is_valu(C.kind) or C.kind in ("dsr", "dsw", "vmem", "dma"):
            if D & (reg(cr) | reg(cw)): n = max(n, 8)
        if is_valu(C.kind) and set(P.srcc) & reg(cw): n = max(n, 3)
    if "m0" in pw and C.kind == "dma": n = max(n, 1)
    if P.kind == "vmem" and P.meta.get("store") and is_valu(C.kind) and reg(pr) & reg(cw): n = max(n, 2)
    return n
def states_of(ins):
    if ins.kind == "nop": return ins.meta["n"]
    if ins.kind == "label": return 0
    return 1 + ins.txt.count("\n") if not ins.meta.get("fused_m0") else 1
def fix_hazards(seq, hist=None, check_only=False):
    hist = [] if hist is None else list(hist)
    out = []; viol = []
    for ins in seq:
        if ins.kind != "label":
            dist = 0; need = 0
            for P in reversed(hist):
                r = need_states(P, ins)
                if r - dist > need: need = r - dist; culprit = P
                dist += states_of(P)
                if dist >= 10: break
            if need > 0:
                if check_only: viol.append((culprit, ins, need))
                else:
                    nop = I(f"s_nop {need-1}", "nop", n=need)
                    out.append(nop); hist.append(nop)
        out.append(ins); hist.append(ins)
        if len(hist) > 24: hist = hist[-24:]
    return out, hist, viol
```

```python
import re, sys, os
sys.path.insert(0, "gen")
from asmlib import *

def dyn_trace(p):
    code = p.main + p.ool
    labels = {}
    for i, ins in enumerate(code):
        if ins.kind == "label": labels[ins.txt[:-1]] = i
    s = {}; scc = 0; pc = 0; out = []
    def val(x):
        x = x.strip()
        if re.fullmatch(r"s\d+", x): return s.get(int(x[1:]))
        try: return int(x, 0)
        except: return None
    n = 0
    while True:
        ins = code[pc]; n += 1
        assert n < 2000000
        out.append((ins, {"pass": s.get(20), "cnt": s.get(21), "head": s.get(34)}))
        nxt = pc + 1
        for t in ins.txt.split("\n"):
            m = re.match(r"(s_\w+)\s*(.*)", t)
            if not m: continue
            op, args = m.group(1), [a.strip() for a in m.group(2).split(",")] if m.group(2) else []
            if op == "s_endpgm": return out
            if op == "s_mov_b32" and re.fullmatch(r"s\d+", args[0]): s[int(args[0][1:])] = val(args[1])
            elif op in ("s_add_u32", "s_sub_u32") and re.fullmatch(r"s\d+", args[0]):
                a, b = val(args[1]), val(args[2])
                s[int(args[0][1:])] = None if a is None or b is None else (a+b if op == "s_add_u32" else a-b) & 0xffffffff
            elif op.startswith("s_cmp_"):
                a, b = val(args[0]), val(args[1])
                assert a is not None and b is not None, t
                scc = {"eq": a == b, "lg": a != b, "ge": a >= b, "lt": a < b}[op.split("_")[2]]
            elif op == "s_cbranch_scc1":
                if scc: nxt = labels[args[0]]; break
            elif op == "s_cbranch_scc0":
                if not scc: nxt = labels[args[0]]; break
            elif op == "s_branch": nxt = labels[args[0]]; break
            elif op == "s_cbranch_vccnz":
                if os.environ.get("FORCE_SLOW"): nxt = labels[args[0]]; break
            elif re.fullmatch(r"s\d+", args[0] if args else "") and op not in ("s_waitcnt","s_nop","s_barrier"):
                if int(args[0][1:]) in (20, 21, 34): s[int(args[0][1:])] = None
        pc = nxt


def auto_vmcnt(p):
    tr = dyn_trace(p)
    issued = []; nb = None; best = {}
    for ins, c in tr:
        ctx = dict(c)
        if ins.meta.get("isattbar"): nb = c["cnt"]
        ctx["nb"] = nb
        if ins.kind in ("dma", "vmem"):
            it_ = ins.meta["item"](ctx)
            if it_ is not None: issued.append(it_)
        if ins.kind == "wait" and ins.meta.get("vm") is not None and ins.meta.get("needs"):
            for it in ins.meta["needs"](ctx):
                idx = max((i for i, x in enumerate(issued) if x == it), default=None)
                if idx is None: continue
                y = len(issued) - 1 - idx
                best[id(ins)] = (ins, min(y, best.get(id(ins), (None, 63))[1]))
    for ins, n in best.values():
        n = min(n, 63)
        ins.txt = re.sub(r"vmcnt\(\d+\)", f"vmcnt({n})", ins.txt); ins.meta["vm"] = n

def check(p, verbose=True):
    tr = dyn_trace(p)
    issued = []; nb = None; bad = 0; slack = {}
    for ins, c in tr:
        ctx = dict(c)
        if ins.meta.get("isattbar"): nb = c["cnt"]
        ctx["nb"] = nb
        if ins.kind in ("dma", "vmem"):
            it_ = ins.meta["item"](ctx)
            if it_ is not None: issued.append(it_)
        if ins.kind == "wait" and ins.meta.get("vm") is not None and ins.meta.get("needs"):
            N = ins.meta["vm"]
            for it in ins.meta["needs"](ctx):
                idx = max((i for i, x in enumerate(issued) if x == it), default=None)
                if idx is None: print("NEVER ISSUED", it, ctx); bad += 1; continue
                younger = len(issued) - 1 - idx
                if younger < N: print("VMCNT VIOLATION", ins.txt, it, "younger", younger, ctx); bad += 1
                slack.setdefault(ins.txt, []).append(younger - N)
    from collections import Counter
    cnt = Counter(issued)
    exp = {}
    dups = {k: v for k, v in cnt.items() if k[0] in ("wq", "wo", "K", "V") and v != 4}
    if dups: print("piece count anomalies:", dups); bad += 1
    nK = sum(1 for k in cnt if k[0] == "K"); nV = sum(1 for k in cnt if k[0] == "V")
    seq = [i for i, _ in tr]
    _, _, viol = fix_hazards(seq, [], check_only=True)
    for P, C, n in viol[:10]: print("HAZARD", P.txt, "->", C.txt, "short", n)
    bad += len(viol)
    pend = []
    for ins in seq:
        if ins.kind == "wait" and ins.meta.get("lgkm") is not None:
            k = ins.meta["lgkm"]; pend = pend[len(pend)-k:] if k else []; continue
        touch = set(r for r in ins.rd + ins.wr if r[0] in "va" and r[1:].isdigit())
        if any(d & touch for d in pend): print("LGKM VIOLATION", ins.txt); bad += 1; pend = []
        if ins.kind == "dsr": pend.append(set(r for r in ins.wr if r != "DSORD"))
        elif ins.kind == "dsw": pend.append(set())
        if len(pend) > 15: print("lgkm overflow"); bad += 1
    nm = sum(1 for i in seq if i.kind == "mfma")
    kinds = Counter(i.kind for i in seq)
    nops = sum(i.meta["n"] for i in seq if i.kind == "nop")
    if verbose: print(f"wave {p.w}: dyn instrs {len(seq)} mfma {nm} K{nK} V{nV} kinds {dict(kinds)} nopstates {nops} bad {bad}")
    return bad

if __name__ == "__main__":
    import gen
    txt, progs = gen.main()
    tot = sum(check(p) for p in progs)
    print("TOTAL BAD", tot)
```

```python
import sys, math, struct
sys.path.insert(0, "gen")
from asmlib import *

SL = 16896
PC = 1056
R1 = 8*SL
OFF_Q13 = [16384, 16384+4096, 16384+8192, 0]
OFF_P13 = 4096
LDS_BYTES = 163840
NAME = "standalone__mha_block_cached__near_ridge"

sX, sK0, sV0, sWQ, sWO, sWS, sB, sVB = 4, 6, 8, 10, 12, 14, 16, 18
sPass, sCnt, sKa, sKb, sVa, sVb, sScale, sThr = 20, 21, 22, 23, 24, 25, 26, 27
sT0, sT1, sT2, sT3 = 28, 29, 30, 31
sST = 32
sHead = 34
sDbg = 36
ACC = 0
def acc(dt, qt): return ACC + 12*dt + 4*qt
def acc13(e): return ACC + 96 + 4*e
QT = 104
LACC = 104
SREG = 120
PREG = 152
CREG = 200
vPatV = 216
vK0, vV0 = 220, 221
vT = 224
vAX, vAL, vPat, vAK, vTmp = 248, 249, 250, 254, 255
def T(k, s, qt): return 48*k + 12*s + 4*qt
def XF(s, qt): return 12*s + 4*qt
POOL = 192
def pool(sg, i): return POOL + 16*sg + 4*i
B13 = 224
ONES = 240
P13 = 244

import os
EXPT = os.environ.get("EXPT", "").split(",")
PROFILE = bool(os.environ.get("PROFILE"))
SCALE = math.log2(math.e) / math.sqrt(128.0)
def f2u(x): return struct.unpack("<I", struct.pack("<f", x))[0]

class Prog:
    def __init__(self, w):
        self.w = w; self.main = []; self.ool = []; self.hist = []; self.pend = []
    def lbl(self, name): return f"{name}_w{self.w}"
    def stamp(self):
        if not PROFILE: return
        self.add([I("s_memtime s[60:61]\ns_memrealtime s[70:71]", "salu", wr=S(60,2)+S(70,2)), I("s_waitcnt lgkmcnt(0)", "wait", lgkm=0),
                  valu("v_accvgpr_read_b32 v255,a252", A(252), V(255)), salu("s_mov_b32 m0,s62", S(62), ["m0"]), I("s_nop 1", "nop", n=2),
                  valu("v_writelane_b32 v255,s60,m0", V(255)+S(60), V(255)), I("s_nop 1", "nop", n=2),
                  valu("v_accvgpr_write_b32 a252,v255", V(255), A(252)),
                  valu("v_accvgpr_read_b32 v255,a254", A(254), V(255)), I("s_nop 1", "nop", n=2),
                  valu("v_writelane_b32 v255,s70,m0", V(255)+S(70), V(255)), I("s_nop 1", "nop", n=2),
                  valu("v_accvgpr_write_b32 a254,v255", V(255), A(254)),
                  salu("s_add_u32 s62,s62,1", S(62), S(62))])
    def stamp_flush(self):
        if not PROFILE: return
        w = self.w
        self.add([salu("s_lshl_b32 s60,s2,10", ["s2"], S(60)), salu(f"s_add_u32 s60,s60,{(64<<20) + w*256}", S(60), S(60)),
                  salu("s_load_dwordx2 s[62:63],s[0:1],56", [], S(62,2)), I("s_waitcnt lgkmcnt(0)", "wait", lgkm=0),
                  salu("s_add_u32 s62,s62,s60", S(62)+S(60), S(62)), salu("s_addc_u32 s63,s63,0", S(63), S(63)),
                  valu("v_accvgpr_read_b32 v255,a252", A(252), V(255)),
                  valu(f"v_subrev_u32 v254,{R1},v{vAL}", V(vAL), V(254)), valu("v_lshrrev_b32 v254,2,v254", V(254), V(254)),
                  I("global_store_dword v254,v255,s[62:63]", "vmem", rd=V(254)+V(255)+S(62,2), item=lambda ctx: ("st",)),
                  I("s_nop 1", "nop", n=2),
                  valu("v_accvgpr_read_b32 v253,a254", A(254), V(253)),
                  salu("s_add_u32 s62,s62,0x100000\ns_addc_u32 s63,s63,0", S(62,2), S(62,2)),
                  I("global_store_dword v254,v253,s[62:63]", "vmem", rd=V(254)+V(253)+S(62,2), item=lambda ctx: ("st",))])
    def add(self, seq, sched=False, **kw):
        if sched: seq = schedule(seq, **kw)
        seq, self.pend = insert_lgkm(seq, self.pend)
        seq, self.hist, _ = fix_hazards(seq, self.hist)
        self.main += seq
    def label(self, name):
        self.main.append(I(f"{self.lbl(name)}:", "label"))
    def add_ool(self, name, seq, back):
        s = [I(f"{self.lbl(name)}:", "label")] + [I("s_nop 1", "nop", n=2)] + list(seq)
        s, _, _ = fix_hazards(s, [])
        s += [I("s_nop 1", "nop", n=2), I(f"s_branch {self.lbl(back)}", "branch")]
        self.ool += s

def alt_anchor(p, name, cmp_txt, rd, wr, seq, skip=()):
    back = name + "_r"
    p.add_ool(name, seq, back)
    g = [I(cmp_txt + f"\ns_cbranch_scc1 {p.lbl(name)}", "branch", rd=list(rd), wr=list(wr), anchor=True)]
    g += list(skip)
    g += [I(f"{p.lbl(back)}:", "label", anchor=True, wr=list(wr))]
    return g

def lane_consts(w):
    L = []
    L.append(valu("v_and_b32 v255,63,v0", V(0), V(255)))
    L.append(valu(f"v_lshlrev_b32 v{vAL},4,v255", V(255), V(vAL)))
    L.append(valu(f"v_add_u32 v{vAL},{R1},v{vAL}", V(vAL), V(vAL)))
    return L
def lane_from_AL(dst):
    return [valu(f"v_subrev_u32 v{dst},{R1},v{vAL}", V(vAL), V(dst)),
            valu(f"v_lshrrev_b32 v{dst},4,v{dst}", V(dst), V(dst))]
def calc_aW(dst, lane, t0, t1):
    return [valu(f"v_bfe_u32 v{t0},v{lane},2,3", V(lane), V(t0)),
            valu(f"v_mul_u32_u24 v{dst},{PC},v{t0}", V(t0), V(dst)),
            valu(f"v_lshrrev_b32 v{t0},5,v{lane}", V(lane), V(t0)),
            valu(f"v_lshlrev_b32 v{t0},8,v{t0}", V(t0), V(t0)),
            valu(f"v_and_b32 v{t1},3,v{lane}", V(lane), V(t1)),
            valu(f"v_lshlrev_b32 v{t1},3,v{t1}", V(t1), V(t1)),
            valu(f"v_add3_u32 v{dst},v{dst},v{t0},v{t1}", V(dst)+V(t0)+V(t1), V(dst))]
def calc_aV(dst, lane, t0, t1):
    return [valu(f"v_lshrrev_b32 v{t0},2,v{lane}", V(lane), V(t0)),
            valu(f"v_mul_u32_u24 v{dst},{PC},v{t0}", V(t0), V(dst)),
            valu(f"v_and_b32 v{t1},3,v{lane}", V(lane), V(t1)),
            valu(f"v_lshl_add_u32 v{dst},v{t1},3,v{dst}", V(t1)+V(dst), V(dst))]
def calc_aK(dst, lane, t0, t1):
    return [valu(f"v_and_b32 v{t0},15,v{lane}", V(lane), V(t0)),
            valu(f"v_mul_u32_u24 v{dst},{PC},v{t0}", V(t0), V(dst)),
            valu(f"v_lshrrev_b32 v{t1},4,v{lane}", V(lane), V(t1)),
            valu(f"v_lshl_add_u32 v{dst},v{t1},4,v{dst}", V(t1)+V(dst), V(dst))]
def calc_pat(dst4, lane, t0, t1, tshift, jstep):
    L = [valu(f"v_lshrrev_b32 v{t0},4,v{lane}", V(lane), V(t0)),
         valu(f"v_lshlrev_b32 v{t0},{tshift},v{t0}", V(t0), V(t0)),
         valu(f"v_and_b32 v{t1},15,v{lane}", V(lane), V(t1)),
         valu(f"v_lshl_add_u32 v{dst4},v{t1},4,v{t0}", V(t0)+V(t1), V(dst4))]
    for j in range(1, 4):
        L.append(valu(f"v_add_u32 v{dst4+j},{j*jstep},v{dst4}", V(dst4), V(dst4+j)))
    return L
PAT_WQ = (17, 8192-256); PAT_KV = (12, 0); PAT_WO = (14, 1024-256)

def add64(dst, src, lit):
    return [salu(f"s_add_u32 s{dst},s{src},{lit}\ns_addc_u32 s{dst+1},s{src+1},0", S(src,2), S(dst,2))]
def add64s(dst, src, sreg):
    return [salu(f"s_add_u32 s{dst},s{src},s{sreg}\ns_addc_u32 s{dst+1},s{src+1},0", S(src,2)+S(sreg), S(dst,2))]

def spread(L, w, start, step):
    k = 0
    for i in L:
        if i.kind == "dma":
            i.meta["min_rel"] = start + w*(step//4) + k*step; i.meta["dl_rel"] = i.meta["min_rel"] + 4; k += 1
    return L
def dma_item_static(w, slot, vpat, sbase, item=None):
    m0 = lambda j: slot*SL + (4*w + j)*PC - 256*j
    L = [salu(f"s_mov_b32 m0,{m0(0)}", [], ["m0"])]
    for j in range(4):
        L.append(dma_next(vpat+j, sbase, 256*j, f"s_mov_b32 m0,{m0(j+1)}" if j < 3 else None, item=item))
    return L
def dma_item_dyn(w, sslot, vpat0, npat, sbase, item=None):
    L = [salu(f"s_add_u32 m0,s{sslot},{4*w*PC}", S(sslot), ["m0"])]
    for j in range(4):
        L.append(dma_next(vpat0 + (j if npat == 4 else 0), sbase, 256*j, f"s_add_u32 m0,m0,{PC-256}" if j < 3 else None, item=item))
    return L

def proj_reads(kind, slot, blk, sg):
    L = []
    base = (slot & 3)*SL
    for dtl in range(2):
        dt = 2*blk + dtl
        for p in range(2):
            for e in range(2):
                if kind == "W": off = base + e*8*PC + p*512 + dt*32
                else:           off = base + (2*p+e)*256 + dt*32
                L.append(ds_tr(pool(sg, 2*dtl+p) + 2*e, vAX, off))
    return L
def proj_mfmas(w, blk, sg, first, Bf, B13f):
    L = []
    for dtl in range(2):
        dt = 2*blk + dtl
        for qt in range(3):
            for p in range(2):
                L.append(mfma(('v', acc(dt, qt)), ('a', pool(sg, 2*dtl+p)), ('a', Bf(qt, p)), 0 if (first and p == 0) else None))
        if blk == w:
            for p in range(2):
                L.append(mfma(('v', acc13(dtl)), ('a', pool(sg, 2*dtl+p)), ('a', B13f(p)), 0 if (first and p == 0) else None))
    return L

PREFETCH = int(os.environ.get("PF", "1"))
sPF = 38
STG = 104
def xload_ops(w, c):
    L = []
    if "nox" in EXPT:
        return [I("s_nop 0", "salu", item=None)] if False else []
    for qt in range(3):
        for pp in range(2):
            s = 2*c+pp
            L.append(I(f"global_load_dwordx4 a[{XF(s,qt)}:{XF(s,qt)+3}],v254,s[{XB[qt]}:{XB[qt]+1}] offset:{s*64} nt", "vmem",
                       rd=V(254)+S(XB[qt],2)+["VMORD"], wr=A(XF(s,qt),4)+["VMORD"], item=lambda ctx, c=c: ("x", c), dl_rel=16))
    return L
XB = [40, 42, 44, 46]
def prefetch_ops(w, isV):
    if not PREFETCH: return []
    src = sV0 if isV else sK0
    L = [salu(f"s_lshl_b32 s{sT2},s{sPass},17", S(sPass), S(sT2))]
    L += add64s(sPF, src, sT2)
    L += add64(sPF, sPF, 31744*w)
    L += [valu(f"v_subrev_u32 v255,{R1},v{vAL}", V(vAL), V(255)), valu("v_lshlrev_b32 v255,5,v255", V(255), V(255))]
    L.append(I(f"global_load_dword a253,v255,s[{sPF}:{sPF+1}]", "vmem", rd=V(255)+S(sPF,2)+["VMORD"], wr=A(253)+["VMORD"],
               item=lambda ctx: ("pf",), dl_rel=30))
    return L
TOUCH = int(os.environ.get("TOUCH", "0"))
sWQT, sWOT, sTB = 64, 66, 68
def touch_slice(w, sbase, head, rowshift, tmp=255):
    if not TOUCH: return []
    L = []
    if head is None:
        L.append(salu(f"s_add_u32 s{sT1},s{sPass},2\ns_and_b32 s{sT1},s{sT1},3\ns_lshl_b32 s{sT1},s{sT1},8", S(sPass), S(sT1)))
        L += add64s(sTB, sbase, sT1)
    else:
        L += add64(sTB, sbase, 256*head)
    L += [valu(f"v_add_u32 v{tmp},{(1024*(w & 1) - R1) & 0xffffffff},v{vAL}", V(vAL), V(tmp)),
          valu(f"v_lshlrev_b32 v{tmp},{rowshift-4},v{tmp}", V(tmp), V(tmp)),
          I(f"global_load_dword a253,v{tmp},s[{sTB}:{sTB+1}] offset:{128*(w >> 1)}", "vmem", rd=V(tmp)+S(sTB,2)+["VMORD"],
            wr=A(253)+["VMORD"], item=lambda ctx: ("touch",), dl_rel=24)]
    return L
def stage(qt, u): return STG + 16*qt + 4*u
sMask = 36
def epiC_cvt(w):
    L = []
    for u in range(4):
        for qt in range(3):
            L += pack_pair(stage(qt, u), acc(2*u, qt), acc(2*u+1, qt))
    L += pack_pair(STG+48, acc13(0), acc13(1))
    return L
def epiC_stores(w, masked, spread):
    L = []; k = 0
    def st(reg, off):
        nonlocal k
        pol = " nt" if "stnt" in EXPT else (" sc1" if "stsc1" in EXPT else (" sc0 sc1" if "stsc01" in EXPT else ""))
        t = f"global_store_dwordx4 v{vAL},v[{reg}:{reg+3}],s[{sST}:{sST+1}] offset:{off}{pol}"
        if masked and "nomask" not in EXPT: t = f"s_mov_b64 exec,s[{sMask}:{sMask+1}]\n{t}\ns_mov_b64 exec,-1"
        meta = dict(store=True, item=(lambda ctx: None if ctx["pass"] == 0 else ("st",)) if (masked and "nomask" not in EXPT) else (lambda ctx: ("st",)))
        if spread: meta.update(min_rel=8 + 22*(k & 1), dl_rel=12 + 22*(k & 1))
        k += 1
        return I(t, "vmem", rd=V(vAL)+V(reg,4)+S(sST,2)+S(sMask,2)+["VMORD"], wr=["VMORD"], **meta)
    for qt in range(3):
        L += add64(sST, sWS, (3*w+qt)*4096)
        for u in range(4): L.append(st(stage(qt, u), u*1024))
    L += add64(sST, sWS, 12*4096)
    L.append(st(STG+48, w*1024))
    return L

def pass_body(p, phase, pass0=False, extra=None):
    w = p.w
    kind = "W" if phase == "A" else "V"
    R = []
    def Bf(c):
        if phase == "A": return lambda qt, pp: XF(2*c+pp, qt)
        hh = c >> 1
        return lambda qt, pp: T((hh+1) & 3, 2*(c & 1)+pp, qt)
    def b13_reads(c):
        L = []
        for pp in range(2):
            if phase == "A": L.append(ds_r128(B13 + 8*(c & 1) + 4*pp, vX13, 1024*(2*c+pp)))
            else: L.append(ds_r128(B13 + 8*(c & 1) + 4*pp, vAL, OFF_Q13[c >> 1] + 1024*(2*(c & 1)+pp)))
        return L
    B13f = lambda c: (lambda pp: B13 + 8*(c & 1) + 4*pp)
    def dma_for(c):
        ch = c - 1
        L = []
        if phase == "A" and pass0:
            if c+2 <= 6:
                L += add64(sB, sWQ, (c+2)*64*8192) + dma_item_static(w, c+2, vPat, sB, item=lambda ctx, c=c: ("wq", 0, c+2))
            if c+2 <= 7: L += xload_ops(w, c+2)
            L += add64(sB, sWQ, 256 + ch*64*8192)
            item = lambda ctx, ch=ch: ("wq", 1, ch)
            if c == 8: return L
        elif phase == "A":
            altL = []
            if c == 1:
                altL += [valu(f"v_subrev_u32 v255,{R1},v{vAL}", V(vAL), V(255)),
                         valu(f"v_and_b32 v{vPat},0xf0,v255", V(255), V(vPat)),
                         valu(f"v_lshrrev_b32 v255,8,v255", V(255), V(255)),
                         valu(f"v_lshl_add_u32 v{vPat},v255,12,v{vPat}", V(255)+V(vPat), V(vPat))]
                altL += [valu(f"v_mov_b32 v{vPat+j},v{vPat}", V(vPat), V(vPat+j)) for j in range(1, 4)]
            if c <= 7:
                kv = ["K0","K1","V0","K2","V1","K3","V2"][ch]
                src = sK0 if kv[0] == "K" else sV0
                altL += add64(sB, src, int(kv[1])*16384)
            else:
                altL += add64(sB, sK0, 0)
            norm = add64(sB, sWQ, 256 + ch*64*8192)
            L += alt_anchor(p, f"Aalt{c}", f"s_cmp_eq_u32 s{sPass},3", S(sPass), S(sB,2)+V(vPat,4)+V(255), altL,
                            skip=[I(x.txt, "salu", rd=x.rd, wr=x.wr, anchor=True) for x in norm])
            item = lambda ctx, ch=ch: ("wq", ctx["pass"]+1, ch) if ctx["pass"] < 3 else [("K",0),("K",1),("V",0),("K",2),("V",1),("K",3),("V",2),("dummy",)][ch]
        else:
            altL = []
            if c == 1:
                altL += [valu(f"v_mov_b32 v{vPat+j},0", [], V(vPat+j)) for j in range(4)]
            altL += add64(sB, sWO, 0)
            norm = add64(sB, sWO, 256 + ch*64*1024)
            L += alt_anchor(p, f"Calt{c}", f"s_cmp_eq_u32 s{sPass},3", S(sPass), S(sB,2)+V(vPat,4), altL,
                            skip=[I(x.txt, "salu", rd=x.rd, wr=x.wr, anchor=True) for x in norm])
            item = lambda ctx, ch=ch: ("wo", ctx["pass"]+1, ch) if ctx["pass"] < 3 else ("dummy",)
        D = dma_item_static(w, ch & 7, vPat, sB, item=item)
        if c == 8 and not pass0: return L
        if not pass0: D = spread(D, w, 3, 11)
        return L + D
    def tail_item():
        if phase == "A": item = lambda ctx: ("wq", ctx["pass"], 7)
        else: item = lambda ctx: ("wo", ctx["pass"], 7)
        return spread(dma_item_static(w, 7, vPat, sB, item=item), w, 2, 9)
    def bar_for(c):
        if phase == "A":
            need = lambda ctx, c=c: [("wq", ctx["pass"], c)] if c < 8 else ([("wq", ctx["pass"]+1, 0)] if ctx["pass"] < 3 else [("K",0)])
        else:
            need = lambda ctx, c=c: [("wo", ctx["pass"], c)] if c < 8 else ([("wo", ctx["pass"]+1, 0)] if ctx["pass"] < 3 else [])
        b = barrier(vm=24, needs=need)
        if pass0:
            if c <= 7:
                N0 = P0N[c]
                return barrier(vm=N0, needs=lambda ctx, c=c: [("wq", 0, c), ("x", c)])
            return b
        if False:
            N0 = 66 - 6*c
            wait_alt = [I(f"s_waitcnt vmcnt({N0}) lgkmcnt(0)", "wait", lgkm=0, vm=N0, needs=lambda ctx, c=c: [("wq", 0, c), ("x", c)])]
            g = alt_anchor(p, f"P0w{c}", f"s_cmp_eq_u32 s{sPass},0", S(sPass), ["LDSF", "DSORD"], wait_alt, skip=[b[0]])
            return g + [b[1]]
        return b
    if not pass0: R += tail_item()
    for c in range(8):
        slot = c
        if c > 0: R += proj_mfmas(w, 3, 1, c-1 == 0, Bf(c-1), B13f(c-1))
        R += proj_reads(kind, slot, 1, 1)
        R += proj_mfmas(w, 0, 0, c == 0, Bf(c), B13f(c))
        R += proj_reads(kind, slot, 2, 0)
        R += proj_mfmas(w, 1, 1, c == 0, Bf(c), B13f(c))
        R += proj_reads(kind, slot, 3, 1)
        R += proj_mfmas(w, 2, 0, c == 0, Bf(c), B13f(c))
        R += bar_for(c+1)
        nslot = (c+1) & 7
        if (c+1) & 3 == 0:
            d = 4*SL if c+1 == 4 else -4*SL
            R.append(valu(f"v_add_u32 v{vAX},{d & 0xffffffff},v{vAX}", V(vAX), V(vAX)))
        rr_ = proj_reads(kind, nslot, 0, 0)
        R += need_end(rr_) if c == 7 else rr_
        rr_ = b13_reads((c+1) & 7)
        R += need_end(rr_) if c == 7 else rr_
        R += dma_for(c+1)
        if extra and c in extra: R += extra[c]
        if phase == "A":
            if pass0 and c+1 in (6, 7): R += prefetch_ops(w, c+1 == 7)
            if not pass0 and c+1 in (1, 4): R += prefetch_ops(w, c+1 == 4)
            if c+1 == 3: R += touch_slice(w, sWQT, 2 if pass0 else None, 13)
        else:
            if c+1 == 3: R += touch_slice(w, sWOT, None, 10)
    R += proj_mfmas(w, 3, 1, False, Bf(7), B13f(7))
    return R, b13_reads, Bf

def p0_counts():
    ops = ["x13"]*4 + ["wq0"]*4 + ["x0"]*6 + ["wq1"]*4 + ["x1"]*6
    N = {}
    def need(c):
        idx = max(i for i, o in enumerate(ops) if o in (f"wq{c}", f"x{c}"))
        return min(63, len(ops)-1-idx)
    N[0] = need(0)
    for c in range(0, 8):
        if c+2 <= 6: ops += [f"wq{c+2}"]*4
        if c+2 <= 7: ops += [f"x{c+2}"]*6
        ops += [f"wq{c+7}"]*4
        if PREFETCH and c in (6, 7): ops += ["pf"]
        if c+1 <= 7: N[c+1] = need(c+1)
    return N
P0N = p0_counts()
vX13, vXR, vXP, vX13P = 254, 104, 108, 110
def x_dma(w, c, which, slot):
    pieces = [(0,0),(0,1),(1,0),(1,1)] if which == "A" else [(2,0),(2,1)]
    dest = lambda qt, j: slot*SL + ((4*w + 2*qt + j) if which == "A" else (2*w + j))*1024
    L = [salu(f"s_mov_b32 m0,{dest(*pieces[0])}", [], ["m0"])]
    for k, (qt, j) in enumerate(pieces):
        nxt = f"s_mov_b32 m0,{dest(*pieces[k+1])}" if k+1 < len(pieces) else None
        L.append(dma_next(vXP+j, XB[qt], 0, nxt, item=lambda ctx, c=c, which=which: ("x"+which, c)))
    for qt in sorted(set(q for q, _ in pieces)): L += add64(XB[qt], XB[qt], 128)
    return L
def x_reads(w, c):
    sA, sB_ = (3*c+1) % 8, (3*c+2) % 8
    L = []
    for qt in range(3):
        tb = sA*SL + (4*w + 2*qt)*1024 if qt < 2 else sB_*SL + 2*w*1024
        hi = 1 if tb >= 4*SL else 0
        for pp in range(2):
            L.append(ds_r128(XF(2*c+pp, qt), vXR + 2*hi + pp, tb - hi*4*SL))
    return L
def p0_load(w, q):
    if q >= 24:
        ch = q - 24
        return add64(sB, sWQ, 256 + ch*64*8192) + dma_item_static(w, q % 8, vPat, sB, item=lambda ctx, ch=ch: ("wq", 1, ch))
    c, r = divmod(q, 3)
    if r == 0: return add64(sB, sWQ, c*64*8192) + dma_item_static(w, q % 8, vPat, sB, item=lambda ctx, c=c: ("wq", 0, c))
    return x_dma(w, c, "A" if r == 1 else "B", q % 8)
def pass0_body(p):
    w = p.w; R = []
    half = [0]
    def reads(c, blk, sg):
        slot = (3*c) % 8 if c < 8 else 0
        L = []
        h = slot >> 2
        if h != half[0]:
            d = 4*SL if h else -4*SL
            L.append(valu(f"v_add_u32 v{vAX},{d & 0xffffffff},v{vAX}", V(vAX), V(vAX))); half[0] = h
        return L + proj_reads("W", slot, blk, sg)
    b13 = lambda c: [ds_r128(B13 + 8*(c & 1) + 4*pp, vX13, 1024*(2*c+pp)) for pp in range(2)]
    Bf = lambda c: (lambda qt, pp: XF(2*c+pp, qt))
    B13f = lambda c: (lambda pp: B13 + 8*(c & 1) + 4*pp)
    first = reads(0, 0, 0) + x_reads(w, 0) + b13(0)
    for c in range(8):
        if c > 0: R += proj_mfmas(w, 3, 1, c-1 == 0, Bf(c-1), B13f(c-1))
        R += reads(c, 1, 1)
        R += proj_mfmas(w, 0, 0, c == 0, Bf(c), B13f(c))
        R += reads(c, 2, 0)
        R += proj_mfmas(w, 1, 1, c == 0, Bf(c), B13f(c))
        R += reads(c, 3, 1)
        R += proj_mfmas(w, 2, 0, c == 0, Bf(c), B13f(c))
        n = c + 1
        if n <= 7: need = lambda ctx, n=n: [("wq", 0, n), ("xA", n), ("xB", n)]
        else: need = lambda ctx: [("wq", 1, 0)]
        R += barrier(vm=0, needs=need)
        rr_ = reads(n, 0, 0) + (x_reads(w, n) if n <= 7 else []) + b13(n & 7)
        R += need_end(rr_) if n == 8 else rr_
        D = []
        for q in range(3*n+5, 3*n+8):
            if q <= 30: D += p0_load(w, q)
        R += spread(D, w, 2, 4)
        if n == 8: R += add64(sB, sWQ, 256 + 7*64*8192)
        if n in (6, 7): R += prefetch_ops(w, n == 7)
        if n == 3: R += touch_slice(w, sWQT, 2, 13)
    R += proj_mfmas(w, 3, 1, False, Bf(7), B13f(7))
    return R, first

def swap_frag(r):
    return [perm32(r, r+2), perm32(r+1, r+3), perm16(r, r+2), perm16(r+1, r+3)]
def pack_pair(dst, a, b):
    return [vcvt(dst, a, a+1), vcvt(dst+1, a+2, a+3), vcvt(dst+2, b, b+1), vcvt(dst+3, b+2, b+3)]

def epiA_common(w):
    L = []
    ss = f"s{sScale}"
    for s in range(4):
        for qt in range(3):
            a, b = acc(2*s, qt), acc(2*s+1, qt)
            L += [vmul_s(a+r, ss) for r in range(4)] + [vmul_s(b+r, ss) for r in range(4)]
            L += pack_pair(a, a, b) + swap_frag(a)
    a, b = acc13(0), acc13(1)
    L += [vmul_s(a+r, ss) for r in range(4)] + [vmul_s(b+r, ss) for r in range(4)]
    L += pack_pair(a, a, b) + swap_frag(a)
    return L
def epiA_head(w, h):
    L = [ds_w128(vAL, acc13(0), OFF_Q13[h] + 1024*w)]
    for s in range(4):
        for qt in range(3):
            a = acc(2*s, qt)
            for r in range(4):
                if h < 3:
                    d = QT + 48*h + 12*s + 4*qt + r
                    L.append(valu(f"v_mov_b32 v{d},v{a+r}", V(a+r), V(d)))
                else:
                    L.append(accw(T(3, s, qt)+r, a+r))
    if h == 3:
        for hh in range(3):
            for i in range(48): L.append(accw(48*hh+i, QT+48*hh+i))
    return L

def Sreg(sset, t): return SREG + 16*sset + 4*t
def Preg(pset, qt, p): return PREG + 24*pset + 8*qt + 4*p
def Qf(qt, s): return T(0, s, qt)
def Q13f(s): return B13 + 4*s
def need_end(L):
    for i in L: i.meta["need_end"] = True
    return L
def k_reads(kt, sg):
    return [ds_r128(pool(sg, s), vAK, kt*256 + s*64) for s in range(4)]
def v_reads(pair, sg):
    L = []
    for dtl in range(2):
        dt = 2*pair + dtl
        for p in range(2):
            for e in range(2):
                L.append(ds_tr(pool(sg, 2*dtl+p) + 2*e, vAX, (2*p+e)*256 + dt*32))
    return L
def qk_block(w, kt, sg, sset, with13, cinit=True):
    L = []
    tiles = [0, 1, 2] + ([3] if with13 else [])
    for t in tiles:
        for s in range(4):
            Bop = Qf(t, s) if t < 3 else Q13f(s)
            C = None if s else (('v', CREG + 4*t) if cinit else 0)
            L.append(mfma(('v', Sreg(sset, t)), ('a', pool(sg, s)), ('a', Bop), C))
    return L
def softmax_block(w, kt, sset, pset, with13, p13par):
    L = []
    tiles = ([3] if with13 else []) + [0, 1, 2]
    for t in tiles:
        r = Sreg(sset, t)
        L += [vexp(r+i) for i in range(4)]
        if t < 3:
            d = Preg(pset, t, kt >> 1) + 2*(kt & 1)
            L += [vcvt(d, r, r+1), vcvt(d+1, r+2, r+3)]
        else:
            L += [vcvt(r, r, r+1), vcvt(r+1, r+2, r+3)]
            L.append(ds_w64(vAL, r, OFF_P13 + 2048*p13par + 1024*(kt >> 1) + 8*(kt & 1)))
    return L
def pv_block(w, pair, sg, pset, first):
    L = []
    for dtl in range(2):
        dt = 2*pair + dtl
        for qt in range(3):
            for p in range(2):
                L.append(mfma(('v', acc(dt, qt)), ('a', pool(sg, 2*dtl+p)), ('v', Preg(pset, qt, p)), 0 if (first and p == 0) else None))
        if pair == w:
            for p in range(2):
                L.append(mfma(('v', acc13(dtl)), ('a', pool(sg, 2*dtl+p)), ('a', P13+4*p), 0 if (first and p == 0) else None))
    return L
def sum_block(pset, first):
    L = []
    for t in range(4):
        for p in range(2):
            Bop = ('v', Preg(pset, t, p)) if t < 3 else ('a', P13+4*p)
            L.append(mfma(('v', LACC+4*t), ('a', ONES), Bop, 0 if (first and p == 0) else None))
    return L
def p13_reads(par):
    return [ds_r128(P13+4*p, vAL, OFF_P13 + 2048*par + 1024*p) for p in range(2)]

def att_tail_dma(p, par, name):
    w = p.w
    sKold = sKa if ((par+1) & 1) == 0 else sKb
    sKnew = sKa if (par & 1) == 0 else sKb
    sVold = sVa if par == 0 else sVb
    sVnew = sVb if par == 0 else sVa
    L = []
    L.append(valu(f"v_add_u32 v{vAK},s{sKnew},v{vK0}", S(sKnew)+V(vK0), V(vAK)))
    L.append(valu(f"v_add_u32 v{vAX},s{sVnew},v{vV0}", S(sVnew)+V(vV0), V(vAX)))
    altK = []
    altK += [valu(f"v_subrev_u32 v255,{R1},v{vAL}", V(vAL), V(255)),
             valu(f"v_and_b32 v{vPat},0xf0,v255", V(255), V(vPat)),
             valu(f"v_lshrrev_b32 v255,8,v255", V(255), V(255)),
             valu(f"v_lshl_add_u32 v{vPat},v255,14,v{vPat}", V(255)+V(vPat), V(vPat))]
    altK += [valu(f"v_add_u32 v{vPat+j},{j*PAT_WO[1]},v{vPat}", V(vPat), V(vPat+j)) for j in range(1, 4)]
    altK += [salu(f"s_mul_hi_u32 s{sT0},s{sKold},{(1<<32)//SL+1}", S(sKold), S(sT0)),
             salu(f"s_lshl_b32 s{sT0},s{sT0},16", S(sT0), S(sT0))] + add64s(sB, sWO, sT0)
    altV = []
    altV += [valu(f"v_subrev_u32 v255,{R1},v{vAL}", V(vAL), V(255)),
             valu(f"v_and_b32 v{vPatV},0xf0,v255", V(255), V(vPatV)),
             valu(f"v_lshrrev_b32 v255,8,v255", V(255), V(255)),
             valu(f"v_lshl_add_u32 v{vPatV},v255,14,v{vPatV}", V(255)+V(vPatV), V(vPatV))]
    altV += [valu(f"v_add_u32 v{vPatV+j},{j*PAT_WO[1]},v{vPatV}", V(vPatV), V(vPatV+j)) for j in range(1, 4)]
    altV += [salu(f"s_mul_hi_u32 s{sT0},s{sVold},{(1<<32)//SL+1}", S(sVold), S(sT0)),
             salu(f"s_lshl_b32 s{sT0},s{sT0},16", S(sT0), S(sT0))] + add64s(sVB, sWO, sT0)
    altV_guard = [I(f"s_cmp_ge_u32 s{sCnt},29\ns_cbranch_scc0 {p.lbl(name+'K_r')}", "branch")]
    L = alt_anchor(p, name+"K", f"s_cmp_ge_u32 s{sCnt},28", S(sCnt)+S(sKold)+S(sVold)+S(sWO,2),
                   S(sB,2)+V(vPat,4)+V(255)+S(sT0)+S(sVB,2)+V(vPatV,4), altK + altV_guard + altV) + L
    L += [salu(f"s_mov_b32 s{sKrel},s{sKold}", S(sKold), S(sKrel)), salu(f"s_mov_b32 s{sVrel},s{sVold}", S(sVold), S(sVrel))]
    kc = 3*SL if sKold == sKa else 6*SL
    vc = 8*SL if sVold == sVa else 11*SL
    L.append(salu(f"s_sub_u32 s{sKold},{kc},s{sKold}", S(sKold), S(sKold)))
    L.append(salu(f"s_sub_u32 s{sVold},{vc},s{sVold}", S(sVold), S(sVold)))
    L.append(salu(f"s_add_u32 s{sCnt},s{sCnt},1", S(sCnt), S(sCnt)))
    return L
sKrel, sVrel = 48, 49
def att_dma(p, span):
    w = p.w
    itemK = lambda ctx: ("K", ctx["nb"]+4) if ctx["nb"]+4 <= 31 else ("wo", 0, [0,1,3,5][(ctx["nb"]+4) & 3])
    itemV = lambda ctx: ("V", ctx["nb"]+3) if ctx["nb"]+3 <= 31 else ("wo", 0, [2,4,6,7][(ctx["nb"]+3) & 3])
    D = dma_item_dyn(w, sKrel, vPat, 4, sB, item=itemK) + add64(sB, sB, 16384)
    D += dma_item_dyn(w, sVrel, vPatV, 4, sVB, item=itemV) + add64(sVB, sVB, 16384)
    return spread(D, w, 2, span//8)

def att_bar():
    need = lambda ctx: [x for x in (("K", ctx["nb"]+1) if ctx["nb"]+1 <= 31 else None, ("V", ctx["nb"])) if x]
    b = barrier(vm=16, needs=need)
    b[0].meta["isattbar"] = True
    if "bartime" in EXPT:
        pre = I("s_memtime s[50:51]", "salu", anchor=True, wr=["LDSF"])
        mid = I("s_memtime s[52:53]\ns_waitcnt lgkmcnt(0)", "salu", anchor=True, wr=["LDSF"])
        post = I("s_memtime s[56:57]\ns_waitcnt lgkmcnt(0)\ns_sub_u32 s50,s52,s50\ns_add_u32 s54,s54,s50\ns_sub_u32 s56,s56,s52\ns_add_u32 s55,s55,s56", "salu", anchor=True, wr=["LDSF"])
        return [pre, b[0], mid, b[1], post]
    return b

def att_pro(p):
    w = p.w
    R = []
    R += k_reads(0, 1)
    R += qk_block(w, 0, 1, 1, True, cinit=False)
    kt0 = w & 3
    R += k_reads(kt0, 0)
    for t in range(4):
        r = Sreg(1, t); c = CREG + 4*t
        R.append(valu(f"v_max3_f32 v{c},v{r},v{r+1},v{r+2}", V(r,3), V(c)))
        R.append(valu(f"v_max_f32 v{c},v{c},v{r+3}", V(c)+V(r+3), V(c)))
        R.append(valu(f"v_mov_b32 v{c+1},v{c}", V(c), V(c+1)))
        R.append(perm16(c, c+1))
        R.append(valu(f"v_max_f32 v{c},v{c},v{c+1}", V(c,2), V(c)))
        R.append(valu(f"v_mov_b32 v{c+1},v{c}", V(c), V(c+1)))
        R.append(perm32(c, c+1))
        R.append(valu(f"v_max_f32 v{c},v{c},v{c+1}", V(c,2), V(c)))
        R.append(valu(f"v_mul_f32 v{c},-1.0,v{c}", V(c), V(c)))
        for i in range(1, 4): R.append(valu(f"v_mov_b32 v{c+i},v{c}", V(c), V(c+i)))
    for j in range(4):
        kt = (w + j) & 3
        if j < 3: R += k_reads((w+j+1) & 3, (j+1) & 1)
        R += qk_block(w, kt, j & 1, j & 1, j == 0)
        R += softmax_block(w, kt, j & 1, 0, j == 0, 0)
    R += att_bar()
    R += att_tail_dma(p, 1, "Pro")
    R += need_end(k_reads(w & 3, 0))
    return R

def expt_filter(R):
    out = []
    for i in R:
        if "noexp" in EXPT and i.kind == "trans": continue
        if "nocvt" in EXPT and i.txt.startswith("CV"): continue
        if "nodma" in EXPT and i.kind == "dma": continue
        if "nobar" in EXPT and i.kind == "bar": continue
        if "nods" in EXPT and i.kind == "dsr": continue
        if "nodsw" in EXPT and i.kind == "dsw": continue
        if "novalu" in EXPT and i.kind == "valu": continue
        if "nosalu" in EXPT and i.kind == "salu" and "m0" in i.wr: continue
        if "noalt" in EXPT and i.kind in ("branch", "label"): continue
        out.append(i)
    return out
def att_iter(p, par, first, name):
    if "Aonly" in EXPT: return att_iter_(p, par, first, name)
    return expt_filter(att_iter_(p, par, first, name))
def att_iter_(p, par, first, name):
    w = p.w
    R = []
    R += p13_reads(par)
    R += att_dma(p, 80)
    for j in range(4):
        kt = (w + j) & 3
        pair = (w + 1 + j) & 3
        R += v_reads(pair, 1)
        R += qk_block(w, kt, 0, j & 1, j == 0)
        if j < 3: R += k_reads((w+j+1) & 3, 0)
        R += softmax_block(w, kt, j & 1, par ^ 1, j == 0, par ^ 1)
        if j == 3:
            R += att_bar()
            R += att_tail_dma(p, par, name)
            R += need_end(k_reads(w & 3, 0))
        R += pv_block(w, pair, 1, par, first)
    R += sum_block(par, first)
    return R

def att_last(p):
    w = p.w; par = 1
    R = []
    R += p13_reads(par)
    R += att_dma(p, 48)
    R += v_reads((w+1) & 3, 1)
    for j in range(4):
        pair = (w + 1 + j) & 3
        sg = (j + 1) & 1
        if j < 3: R += v_reads((w+2+j) & 3, j & 1)
        R += pv_block(w, pair, sg, par, False)
    R += sum_block(par, False)
    return R

def epiB_common(p):
    L = []
    rl = vT
    for t in range(4):
        L.append(valu(f"v_rcp_f32 v{rl+t},v{LACC+4*t}", V(LACC+4*t), V(rl+t), kind="trans"))
    for s in range(4):
        for qt in range(3):
            a, b = acc(2*s, qt), acc(2*s+1, qt)
            L += [vmul_s(a+r, f"v{rl+qt}") for r in range(4)] + [vmul_s(b+r, f"v{rl+qt}") for r in range(4)]
            L += pack_pair(a, a, b)
    a, b = acc13(0), acc13(1)
    L += [vmul_s(a+r, f"v{rl+3}") for r in range(4)] + [vmul_s(b+r, f"v{rl+3}") for r in range(4)]
    L += pack_pair(a, a, b)
    return L
def epiB_head(w, h):
    L = [ds_w128(vAL, acc13(0), OFF_Q13[h] + 1024*w)]
    dst = (h+1) & 3
    if h < 3:
        for i in range(48): L.append(accm(i, 48*dst+i))
    for s in range(4):
        for qt in range(3):
            for r in range(4): L.append(accw(T(dst, s, qt)+r, acc(2*s, qt)+r))
    return L
def q13_reads(h):
    return [ds_r128(Q13f(s), vAL, OFF_Q13[h] + 1024*s) for s in range(4)]

def epiC(w):
    L = []
    for qt in range(3):
        Tq = 3*w + qt
        L += add64(sST, sWS, Tq*4096)
        for u in range(4):
            a, b = acc(2*u, qt), acc(2*u+1, qt)
            L += pack_pair(a, a, b)
            L.append(I(f"global_store_dwordx4 v{vAL},v[{a}:{a+3}],s[{sST}:{sST+1}] offset:{u*1024}", "vmem",
                       rd=V(vAL)+V(a,4)+S(sST,2)+["VMORD"], wr=["VMORD"], store=True, item=lambda ctx: ("st",)))
    L += add64(sST, sWS, 12*4096)
    a, b = acc13(0), acc13(1)
    L += pack_pair(a, a, b)
    L.append(I(f"global_store_dwordx4 v{vAL},v[{a}:{a+3}],s[{sST}:{sST+1}] offset:{w*1024}", "vmem",
               rd=V(vAL)+V(a,4)+S(sST,2)+["VMORD"], wr=["VMORD"], store=True, item=lambda ctx: ("st",)))
    return L

def wave_program(w):
    p = Prog(w)
    if PROFILE:
        p.add([salu("s_mov_b32 s54,0", [], S(54)), salu("s_mov_b32 s55,0", [], S(55)), salu("s_mov_b32 s62,0", [], S(62)), valu("v_accvgpr_write_b32 a252,0", [], A(252)), valu("v_accvgpr_write_b32 a254,0", [], A(254))])
        p.stamp()
    P = []
    a = lambda t, rd=(), wr=(): P.append(salu(t, rd, wr))
    for d, s_ in ((sWQT, sWQ), (sWOT, sWO)):
        a(f"s_mov_b32 s{d},s{s_}", S(s_), S(d)); a(f"s_mov_b32 s{d+1},s{s_+1}", S(s_+1), S(d+1))
    a(f"s_and_b32 s{sT0},s2,7", ["s2"], S(sT0))
    a(f"s_lshr_b32 s{sT1},s2,3", ["s2"], S(sT1))
    a(f"s_lshr_b32 s{sT2},s{sT1},3", S(sT1), S(sT2))
    a(f"s_lshl_b32 s{sT0},s{sT0},2", S(sT0), S(sT0))
    a(f"s_add_u32 s{sT0},s{sT0},s{sT2}", S(sT0)+S(sT2), S(sT0))
    a(f"s_and_b32 s{sT1},s{sT1},7", S(sT1), S(sT1))
    a(f"s_mul_i32 s{sT2},s{sT0},212992", S(sT0), S(sT2)); P += add64s(sX, sX, sT2)
    a(f"s_lshl_b32 s{sT2},s{sT0},22", S(sT0), S(sT2))
    a(f"s_lshl_b32 s{sT3},s{sT1},19", S(sT1), S(sT3))
    a(f"s_add_u32 s{sT2},s{sT2},s{sT3}", S(sT2)+S(sT3), S(sT2))
    a(f"s_add_u32 s{sT2},s{sT2},{4*w*256}", S(sT2), S(sT2))
    if "kvl2" in EXPT:
        a(f"s_mov_b32 s{sT2},{4*w*256}", [], S(sT2))
    P += add64s(sK0, sK0, sT2); P += add64s(sV0, sV0, sT2)
    rowoff = 4*(w >> 1) + 8*(w & 1)
    a(f"s_lshl_b32 s{sT2},s{sT1},10", S(sT1), S(sT2))
    a(f"s_add_u32 s{sT2},s{sT2},{rowoff*8192}", S(sT2), S(sT2))
    P += add64s(sWQ, sWQ, sT2)
    a(f"s_add_u32 s{sT2},s{sT3},{4*w*1024}", S(sT3), S(sT2))
    P += add64s(sWO, sWO, sT2)
    a(f"s_and_b32 s{sT2},s{sT0},3", S(sT0), S(sT2))
    a(f"s_lshl_b32 s{sTB},s{sT2},20", S(sT2), S(sTB))
    a(f"s_lshl_b32 s{sTB+1},s{sT1},10", S(sT1), S(sTB+1))
    a(f"s_add_u32 s{sTB},s{sTB},s{sTB+1}", S(sTB,2), S(sTB))
    P += add64s(sWQT, sWQT, sTB)
    a(f"s_lshl_b32 s{sTB},s{sT2},17", S(sT2), S(sTB))
    a(f"s_add_u32 s{sTB},s{sTB},s{sT3}", S(sTB)+S(sT3), S(sTB))
    P += add64s(sWOT, sWOT, sTB)
    a(f"s_lshl_b32 s{sT2},s{sT0},3", S(sT0), S(sT2))
    a(f"s_add_u32 s{sT2},s{sT2},s{sT1}", S(sT2)+S(sT1), S(sT2))
    a(f"s_mul_i32 s{sT2},s{sT2},212992", S(sT2), S(sT2))
    P += add64s(sWS, sWS, sT2)
    a(f"s_sub_u32 s{sWS},s{sWS},{R1}", S(sWS), S(sWS))
    a(f"s_subb_u32 s{sWS+1},s{sWS+1},0", S(sWS+1), S(sWS+1))
    a(f"s_mov_b32 s{sScale},{f2u(SCALE):#x}", [], S(sScale))
    a(f"s_mov_b32 s{sThr},{f2u(2.0**40):#x}", [], S(sThr))
    a(f"s_mov_b32 s{sPass},0", [], S(sPass))
    P += lane_consts(w)
    P += calc_aW(vAX, 255, 0, 1)
    P += calc_pat(vPat, 255, 0, 1, *PAT_WQ)
    P += [valu("v_and_b32 v2,15,v255", V(255), V(2)), valu("v_lshlrev_b32 v2,10,v2", V(2), V(2)),
          valu("v_lshrrev_b32 v3,4,v255", V(255), V(3)), valu("v_lshl_add_u32 v2,v3,4,v2", V(2)+V(3), V(2))]
    for i in range(4): P.append(I(f"v_accvgpr_write_b32 a{ONES+i},s{sT3}", "valu", rd=S(sT3), wr=A(ONES+i)))
    P.insert(len(P)-4, salu(f"s_mov_b32 s{sT3},0x3f803f80", [], S(sT3)))
    if TOUCH:
        a(f"s_mul_i32 s{sT2},s{sT1},26624", S(sT1), S(sT2)); P += add64s(sTB, sX, sT2)
        P += [valu(f"v_subrev_u32 v4,{R1},v{vAL}", V(vAL), V(4)), valu("v_min_u32 v4,816,v4", V(4), V(4)),
              valu("v_lshlrev_b32 v4,3,v4", V(4), V(4)), valu(f"v_add_u32 v4,{6656*w},v4", V(4), V(4)),
              I(f"global_load_dword a253,v4,s[{sTB}:{sTB+1}]", "vmem", rd=V(4)+S(sTB,2)+["VMORD"], wr=A(253)+["VMORD"], item=lambda ctx: ("touch",))]
        P += touch_slice(w, sWQT, 0, 13, tmp=5) + touch_slice(w, sWQT, 1, 13, tmp=6)
    V_ = lambda t, rd, wr: P.append(valu(t, rd, wr))
    V_("v_lshrrev_b32 v4,3,v255", V(255), V(4)); V_("v_lshrrev_b32 v5,1,v4", V(4), V(5)); V_("v_and_b32 v6,7,v255", V(255), V(6))
    V_("v_xor_b32 v7,v5,v6", V(5)+V(6), V(7)); V_("v_lshlrev_b32 v7,4,v7", V(7), V(7)); V_(f"v_lshl_add_u32 v{vXP},v4,10,v7", V(4)+V(7), V(vXP))
    V_(f"v_xor_b32 v{vXP+1},64,v{vXP}", V(vXP), V(vXP+1)); V_(f"v_add_u32 v{vXP+1},8192,v{vXP+1}", V(vXP+1), V(vXP+1))
    V_("v_and_b32 v4,15,v255", V(255), V(4)); V_("v_lshrrev_b32 v5,4,v255", V(255), V(5)); V_("v_lshrrev_b32 v6,1,v4", V(4), V(6))
    V_("v_xor_b32 v7,v5,v6", V(5)+V(6), V(7)); V_("v_lshlrev_b32 v7,4,v7", V(7), V(7)); V_(f"v_lshl_add_u32 v{vXR},v4,7,v7", V(4)+V(7), V(vXR))
    V_(f"v_xor_b32 v{vXR+1},64,v{vXR}", V(vXR), V(vXR+1))
    V_(f"v_add_u32 v{vXR+2},{4*SL},v{vXR}", V(vXR), V(vXR+2)); V_(f"v_add_u32 v{vXR+3},{4*SL},v{vXR+1}", V(vXR+1), V(vXR+3))
    V_("v_lshrrev_b32 v6,2,v4", V(4), V(6)); V_("v_sub_u32 v6,4,v6", V(6), V(6)); V_("v_and_b32 v6,3,v6", V(6), V(6))
    V_("v_xor_b32 v7,v5,v6", V(5)+V(6), V(7)); V_("v_lshlrev_b32 v7,4,v7", V(7), V(7)); V_(f"v_lshl_add_u32 v{vX13},v4,6,v7", V(4)+V(7), V(vX13))
    V_(f"v_add_u32 v{vX13},{R1},v{vX13}", V(vX13), V(vX13))
    V_("v_lshrrev_b32 v4,2,v255", V(255), V(4)); V_("v_sub_u32 v6,4,v5", V(5), V(6)); V_("v_and_b32 v6,3,v6", V(6), V(6))
    V_("v_and_b32 v7,3,v255", V(255), V(7)); V_("v_xor_b32 v7,v6,v7", V(6)+V(7), V(7)); V_("v_lshlrev_b32 v7,4,v7", V(7), V(7))
    V_(f"v_lshl_add_u32 v{vX13P},v4,10,v7", V(4)+V(7), V(vX13P))
    for qt in range(3): P += add64(XB[qt], sX, (48*w + 16*qt)*1024)
    P += add64(XB[3], sX, 192*1024 + 256*w)
    for q in range(3): P += p0_load(w, q)
    P.append(salu(f"s_mov_b32 m0,{R1 + 4096*w}", [], ["m0"]))
    for i in range(4):
        P.append(dma_next(vX13P, XB[3], 64*i, f"s_mov_b32 m0,{R1 + 4096*w + (i+1)*(1024-64)}" if i < 3 else None, item=lambda ctx: ("x13",)))
    for q in range(3, 8): P += p0_load(w, q)
    p.add(P); p.stamp(); P = []
    P += barrier(vm=0, needs=lambda ctx: [("wq", 0, 0), ("xA", 0), ("xB", 0), ("x13",)])
    body0, first0 = pass0_body(p)
    bodyA, b13A, _ = pass_body(p, "A")
    P += first0
    p.add(P)
    p.add([I("LG 0", "wait", lgkm=0)])
    p.stamp()
    if "p0nodma" in EXPT: body0 = [i for i in body0 if i.kind != "dma"]
    p.add(body0 + epiA_common(w), sched=True)
    p.add(epiA_head(w, 0))
    p.add(add64(sWQ, sWQ, 256) + [salu(f"s_add_u32 s{sPass},s{sPass},1", S(sPass), S(sPass))])
    p.label("LA")
    p.add([I("LG 0", "wait", lgkm=0)])
    p.stamp()
    if "Aonly" in EXPT: bodyA = expt_filter(bodyA)
    p.add(bodyA + epiA_common(w), sched=True)
    for h in range(1, 4):
        if h < 3:
            p.add([salu(f"s_cmp_eq_u32 s{sPass},{h}", S(sPass), ["scc"]), I(f"s_cbranch_scc0 {p.lbl('EA%d'%(h+1))}", "branch", rd=["scc"])])
        p.add(epiA_head(w, h))
        if h < 3:
            p.add(add64(sWQ, sWQ, 256) + [salu(f"s_add_u32 s{sPass},s{sPass},1", S(sPass), S(sPass)),
                   I(f"s_branch {p.lbl('LA')}", "branch")])
            p.label(f"EA{h+1}")
    p.stamp()
    P = []
    P += lane_from_AL(vT)
    P += calc_aK(vK0, vT, vT+1, vT+2)
    P += calc_aV(vV0, vT, vT+1, vT+2)
    P += calc_pat(vPat, vT, vT+1, vT+2, *PAT_KV)
    P += [valu(f"v_mov_b32 v{vPatV+j},v{vPat}", V(vPat), V(vPatV+j)) for j in range(4)]
    P += [salu(f"s_mov_b32 s{sKa},0", [], S(sKa)), salu(f"s_mov_b32 s{sKb},{SL}", [], S(sKb)),
          salu(f"s_mov_b32 s{sVa},{2*SL}", [], S(sVa)), salu(f"s_mov_b32 s{sVb},{7*SL}", [], S(sVb)),
          salu(f"s_mov_b32 s{sCnt},0", [], S(sCnt)), salu(f"s_mov_b32 s{sHead},0", [], S(sHead))]
    P += add64(sB, sK0, 4*16384) + add64(sVB, sV0, 3*16384)
    P += barrier(vm=None)
    p.add(P)
    p.label("LB")
    for h in range(4):
        if h < 3:
            p.add([salu(f"s_cmp_eq_u32 s{sHead},{h}", S(sHead), ["scc"]), I(f"s_cbranch_scc0 {p.lbl('QB%d'%(h+1))}", "branch", rd=["scc"])])
        p.add(q13_reads(h))
        if h < 3:
            p.add([I(f"s_branch {p.lbl('QBX')}", "branch")]); p.label(f"QB{h+1}")
    p.label("QBX")
    p.add([I("LG 0", "wait", lgkm=0),
           valu(f"v_mov_b32 v{vAK},v{vK0}", V(vK0), V(vAK))])
    p.stamp()
    p.add(att_pro(p), sched=True)
    p.add([I("LG 0", "wait", lgkm=0)])
    p.stamp()
    p.add(att_iter(p, 0, True, "It0"), sched=True)
    p.add([salu(f"s_mov_b32 s{sPass},3", [], S(sPass))])
    p.stamp()
    p.label("LI")
    p.add([I("LG 0", "wait", lgkm=0)])
    p.add(att_iter(p, 1, False, "ItO"), sched=True)
    p.add([I("LG 0", "wait", lgkm=0)])
    p.add(att_iter(p, 0, False, "ItE"), sched=True)
    p.add([salu(f"s_sub_u32 s{sPass},s{sPass},1", S(sPass), S(sPass)),
           salu(f"s_cmp_lg_u32 s{sPass},0", S(sPass), ["scc"]), I(f"s_cbranch_scc1 {p.lbl('LI')}", "branch", rd=["scc"])])
    p.add([I("LG 0", "wait", lgkm=0)])
    p.stamp()
    p.add(att_last(p) + epiB_common(p), sched=True)
    p.stamp()
    for h in range(4):
        if h < 3:
            p.add([salu(f"s_cmp_eq_u32 s{sHead},{h}", S(sHead), ["scc"]), I(f"s_cbranch_scc0 {p.lbl('EB%d'%(h+1))}", "branch", rd=["scc"])])
        p.add(epiB_head(w, h) + (touch_slice(w, sWOT, h-1, 10) if h in (1, 2) else []))
        if h < 3:
            p.add([salu(f"s_add_u32 s{sHead},s{sHead},1", S(sHead), S(sHead)), I(f"s_branch {p.lbl('LB')}", "branch")])
            p.label(f"EB{h+1}")
    P = []
    P += [valu(f"v_mov_b32 v{vAX},v{vV0}", V(vV0), V(vAX)), salu(f"s_mov_b32 s{sPass},0", [], S(sPass))]
    P += barrier(vm=24, needs=lambda ctx: [("wo", 0, 0)])
    stC = epiC_stores(w, True, True)
    if "nostore" in EXPT: stC = []
    groups = {}; cur = []; ns = 0; c = 0
    for i in stC:
        cur.append(i)
        if i.kind == "vmem":
            ns += 1
            if ns % 2 == 0 or ns == 13: groups[c] = cur; cur = []; c += 1
    bodyC, b13C, _ = pass_body(p, "C", extra=groups)
    P += proj_reads("V", 0, 0, 0) + b13C(0)
    P += add64(sB, sWO, 7*64*1024)
    p.add(P)
    p.add([salu(f"s_mov_b64 s[{sMask}:{sMask+1}],0", [], S(sMask,2))])
    p.label("LC")
    p.add([I("LG 0", "wait", lgkm=0)])
    p.stamp()
    p.add(bodyC + epiC_cvt(w), sched=True)
    p.stamp()
    p.add(add64(sWO, sWO, 0 if "wosame" in EXPT else 256) +
          [salu(f"s_cmp_eq_u32 s{sPass},0\ns_cselect_b32 s{sT0},0,53248", S(sPass), S(sT0))] + add64s(sWS, sWS, sT0) +
          [salu(f"s_mov_b64 s[{sMask}:{sMask+1}],-1", [], S(sMask,2)),
           salu(f"s_add_u32 s{sPass},s{sPass},1", S(sPass), S(sPass)),
           salu(f"s_cmp_lg_u32 s{sPass},4", S(sPass), ["scc"]), I(f"s_cbranch_scc1 {p.lbl('LC')}", "branch", rd=["scc"])])
    p.add(epiC_stores(w, False, False))
    p.stamp()
    p.add([I("s_waitcnt vmcnt(0) lgkmcnt(0)", "wait", lgkm=0, vm=0)])
    p.stamp()
    if "bartime" in EXPT:
        for sr in (54, 55):
            p.add([valu("v_accvgpr_read_b32 v255,a252", A(252), V(255)), salu("s_mov_b32 m0,s62", S(62), ["m0"]), I("s_nop 1", "nop", n=2),
                   valu(f"v_writelane_b32 v255,s{sr},m0", V(255), V(255)), I("s_nop 1", "nop", n=2),
                   valu("v_accvgpr_write_b32 a252,v255", V(255), A(252)), salu("s_add_u32 s62,s62,1", S(62), S(62))])
    p.stamp_flush()
    p.add([I("s_waitcnt vmcnt(0) lgkmcnt(0)", "wait", lgkm=0, vm=0), I("s_endpgm", "end")])
    return p

HEADER = open("standalone__mha_block_cached__near_ridge.s.ref").read().split("; Override launch")[0]

def kd(name, vgpr, accum, sgpr=96):
    return f""".section .rodata,"a"
.p2align 6
.amdhsa_kernel {name}
  .amdhsa_next_free_vgpr {vgpr}
  .amdhsa_next_free_sgpr {sgpr}
  .amdhsa_accum_offset {accum}
  .amdhsa_group_segment_fixed_size 0
  .amdhsa_kernarg_size 64
  .amdhsa_user_sgpr_count 2
  .amdhsa_user_sgpr_kernarg_segment_ptr 1
  .amdhsa_system_sgpr_workgroup_id_x 1
  .amdhsa_float_denorm_mode_32 3
.end_amdhsa_kernel
"""

RED_WGS = 832
def reduce_kernel():
    n = "mha_reduce_kernel"
    L = []
    a = L.append
    a(f".text\n.globl {n}\n.p2align 8\n.type {n},@function\n{n}:")
    a(f"s_cmp_ge_u32 s2,{RED_WGS}"); a("s_cbranch_scc1 RED_END")
    a("s_load_dwordx2 s[4:5],s[0:1],56"); a("s_load_dwordx2 s[6:7],s[0:1],40")
    a("v_lshrrev_b32 v1,6,v0"); a("s_nop 0"); a("v_readfirstlane_b32 s8,v1")
    a("s_lshl_b32 s9,s2,2"); a("s_nop 2"); a("s_add_u32 s8,s8,s9")
    a(f"s_mul_hi_u32 s10,s8,{(1<<32)//104+1}")
    a("s_mul_i32 s11,s10,104"); a("s_sub_u32 s11,s8,s11")
    a(f"s_mul_hi_u32 s12,s11,{(1<<32)//26+1}")
    a("s_mul_i32 s13,s12,26"); a("s_sub_u32 s13,s11,s13")
    a("s_mul_i32 s14,s10,1703936"); a("s_mul_i32 s15,s12,53248"); a("s_add_u32 s14,s14,s15")
    a("s_lshl_b32 s15,s13,11"); a("s_add_u32 s14,s14,s15")
    a("v_and_b32 v2,63,v0"); a("v_lshlrev_b32 v3,4,v2")
    a("s_waitcnt lgkmcnt(0)")
    a("s_add_u32 s4,s4,s14"); a("s_addc_u32 s5,s5,0")
    for g in range(8):
        a(f"global_load_dwordx4 v[{8+8*g}:{11+8*g}],v3,s[4:5]")
        a(f"global_load_dwordx4 v[{12+8*g}:{15+8*g}],v3,s[4:5] offset:1024")
        if g < 7:
            a("s_add_u32 s4,s4,212992"); a("s_addc_u32 s5,s5,0")
    a("s_lshr_b32 s16,s13,1"); a("s_and_b32 s17,s13,1")
    a("s_mul_i32 s18,s10,208"); a("s_lshl_b32 s16,s16,4"); a("s_add_u32 s18,s18,s16"); a("s_lshl_b32 s18,s18,10")
    a("s_lshl_b32 s19,s12,8"); a("s_add_u32 s18,s18,s19"); a("s_lshl_b32 s19,s17,7"); a("s_add_u32 s18,s18,s19")
    a("s_add_u32 s6,s6,s18"); a("s_addc_u32 s7,s7,0")
    a("v_and_b32 v4,15,v2"); a("v_lshlrev_b32 v4,7,v4"); a("v_lshrrev_b32 v5,4,v2"); a("v_lshl_add_u32 v4,v5,4,v4")
    a("v_lshlrev_b32 v5,11,v1"); a("v_add_u32 v4,v4,v5"); a("v_add_u32 v100,v3,v5")
    a("v_lshrrev_b32 v101,3,v2"); a("v_lshlrev_b32 v101,10,v101"); a("v_and_b32 v102,7,v2"); a("v_lshl_add_u32 v101,v102,4,v101")
    a("s_mov_b32 s20,0xffff0000")
    for g in range(8):
        a(f"s_waitcnt vmcnt({14-2*g})")
        for i in range(8):
            r = 8+8*g+i
            if g == 0:
                a(f"v_lshlrev_b32 v{72+2*i},16,v{r}"); a(f"v_and_b32 v{73+2*i},s20,v{r}")
            else:
                a(f"v_lshlrev_b32 v6,16,v{r}"); a(f"v_and_b32 v7,s20,v{r}")
                a(f"v_add_f32 v{72+2*i},v{72+2*i},v6"); a(f"v_add_f32 v{73+2*i},v{73+2*i},v7")
    for i in range(8): a(f"v_cvt_pk_bf16_f32 v{88+i},v{72+2*i},v{73+2*i}")
    a("s_nop 1")
    for e in range(2):
        r = 88+4*e
        a(f"v_permlane32_swap_b32 v{r},v{r+2}"); a(f"v_permlane32_swap_b32 v{r+1},v{r+3}")
    a("s_nop 1")
    for e in range(2):
        r = 88+4*e
        a(f"v_permlane16_swap_b32 v{r},v{r+2}"); a(f"v_permlane16_swap_b32 v{r+1},v{r+3}")
    a("s_nop 1")
    a("ds_write_b128 v4,v[88:91]"); a("ds_write_b128 v4,v[92:95] offset:64"); a("s_waitcnt lgkmcnt(0)")
    a("ds_read_b128 v[88:91],v100"); a("ds_read_b128 v[92:95],v100 offset:1024"); a("s_waitcnt lgkmcnt(1)")
    a("global_store_dwordx4 v101,v[88:91],s[6:7]")
    a("s_add_u32 s6,s6,8192"); a("s_addc_u32 s7,s7,0"); a("s_waitcnt lgkmcnt(0)")
    a("global_store_dwordx4 v101,v[92:95],s[6:7]")
    a("RED_END:"); a("s_endpgm")
    return "\n".join(L) + "\n" + kd(n, 104, 104, 32)

def main():
    n = "mha_main_kernel"
    progs = [wave_program(w) for w in range(4)]
    if "noautovm" not in EXPT:
        import trace as _tr
        for p in progs: _tr.auto_vmcnt(p)
    if "cvm63" in EXPT:
        import re as _re
        for p in progs:
            seen = False
            for i in p.main:
                if i.kind == "label" and i.txt.startswith("LC_"): seen = True
                if seen and i.kind == "wait" and i.meta.get("needs"): i.txt = _re.sub(r"vmcnt\(\d+\)", "vmcnt(63)", i.txt)
    out = [HEADER.rstrip("\n")]
    out.append(f"; @launch kernel={n} grid=(256,1,1) block=(256,1,1) lds={LDS_BYTES}")
    out.append(f"; @launch kernel=mha_reduce_kernel grid=({RED_WGS},1,1) block=(256,1,1) lds=8192")
    out.append('.amdgcn_target "amdgcn-amd-amdhsa--gfx950"')
    out.append(MACROS)
    out.append(f".text\n.globl {n}\n.p2align 8\n.type {n},@function\n{n}:")
    E = ["s_cmp_ge_u32 s2,256", "s_cbranch_scc0 GO", "s_endpgm", "GO:",
         "s_load_dwordx4 s[4:7],s[0:1],0", "s_load_dwordx4 s[8:11],s[0:1],16", "s_load_dwordx2 s[12:13],s[0:1],32",
         "s_load_dwordx2 s[14:15],s[0:1],56",
         "v_lshrrev_b32 v1,6,v0", "s_nop 0", "v_readfirstlane_b32 s28,v1", "s_waitcnt lgkmcnt(0)"]
    for w in range(1, 4):
        E += [f"s_cmp_eq_u32 s28,{w}", f"s_cbranch_scc0 NX{w}", "s_getpc_b64 s[30:31]", f"PC{w}:",
              f"s_add_u32 s30,s30,W{w}-PC{w}", "s_addc_u32 s31,s31,0", "s_setpc_b64 s[30:31]", f"NX{w}:"]
    out += E
    for w, p in enumerate(progs):
        out.append(".p2align 6"); out.append(f"W{w}:")
        out += [i.txt for i in p.main]
        out += [i.txt for i in p.ool]
    out.append(kd(n, 512, 256))
    out.append(reduce_kernel())
    txt = "\n".join(out) + "\n"
    return txt, progs

if __name__ == "__main__":
    txt, progs = main()
    dst = sys.argv[1] if len(sys.argv) > 1 else "standalone__mha_block_cached__near_ridge.s"
    open(dst, "w").write(txt)
    print("bytes", len(txt), "instrs/wave", [len(p.main)+len(p.ool) for p in progs])
```

```python
import sys, math, struct
sys.path.insert(0, "gen")
from asmlib import *

SL = 16896
PC = 1056
R1 = 8*SL
OFF_Q13 = [16384, 16384+4096, 16384+8192, 0]
OFF_P13 = 4096
LDS_BYTES = 163840
NAME = "standalone__mha_block_cached__near_ridge"

sX, sK0, sV0, sWQ, sWO, sWS, sB, sVB = 4, 6, 8, 10, 12, 14, 16, 18
sPass, sCnt, sKa, sKb, sVa, sVb, sScale, sThr = 20, 21, 22, 23, 24, 25, 26, 27
sT0, sT1, sT2, sT3 = 28, 29, 30, 31
sST = 32
sHead = 34
sDbg = 36
ACC = 0
def acc(dt, qt): return ACC + 12*dt + 4*qt
def acc13(e): return ACC + 96 + 4*e
QT = 104
LACC = 104
SREG = 120
PREG = 152
CREG = 200
vPatV = 216
vK0, vV0 = 220, 221
vT = 224
vAX, vAL, vPat, vAK, vTmp = 248, 249, 250, 254, 255
def T(k, s, qt): return 48*k + 12*s + 4*qt
def XF(s, qt): return 12*s + 4*qt
POOL = 192
def pool(sg, i): return POOL + 16*sg + 4*i
B13 = 224
ONES = 240
P13 = 244

import os
EXPT = os.environ.get("EXPT", "").split(",")
PROFILE = bool(os.environ.get("PROFILE"))
ICWARM = int(os.environ.get("ICWARM", "1"))
SCALE = math.log2(math.e) / math.sqrt(128.0)
def f2u(x): return struct.unpack("<I", struct.pack("<f", x))[0]

class Prog:
    def __init__(self, w):
        self.w = w; self.main = []; self.ool = []; self.hist = []; self.pend = []
    def lbl(self, name): return f"{name}_w{self.w}"
    def stamp(self):
        if not PROFILE: return
        self.add([I("s_memtime s[60:61]\ns_memrealtime s[70:71]", "salu", wr=S(60,2)+S(70,2)), I("s_waitcnt lgkmcnt(0)", "wait", lgkm=0),
                  valu("v_accvgpr_read_b32 v255,a252", A(252), V(255)), salu("s_mov_b32 m0,s62", S(62), ["m0"]), I("s_nop 1", "nop", n=2),
                  valu("v_writelane_b32 v255,s60,m0", V(255)+S(60), V(255)), I("s_nop 1", "nop", n=2),
                  valu("v_accvgpr_write_b32 a252,v255", V(255), A(252)),
                  valu("v_accvgpr_read_b32 v255,a254", A(254), V(255)), I("s_nop 1", "nop", n=2),
                  valu("v_writelane_b32 v255,s70,m0", V(255)+S(70), V(255)), I("s_nop 1", "nop", n=2),
                  valu("v_accvgpr_write_b32 a254,v255", V(255), A(254)),
                  salu("s_add_u32 s62,s62,1", S(62), S(62))])
    def stamp_flush(self):
        if not PROFILE: return
        w = self.w
        self.add([salu("s_lshl_b32 s60,s2,10", ["s2"], S(60)), salu(f"s_add_u32 s60,s60,{(64<<20) + w*256}", S(60), S(60)),
                  salu("s_load_dwordx2 s[62:63],s[0:1],56", [], S(62,2)), I("s_waitcnt lgkmcnt(0)", "wait", lgkm=0),
                  salu("s_add_u32 s62,s62,s60", S(62)+S(60), S(62)), salu("s_addc_u32 s63,s63,0", S(63), S(63)),
                  valu("v_accvgpr_read_b32 v255,a252", A(252), V(255)),
                  valu(f"v_subrev_u32 v254,{R1},v{vAL}", V(vAL), V(254)), valu("v_lshrrev_b32 v254,2,v254", V(254), V(254)),
                  I("global_store_dword v254,v255,s[62:63]", "vmem", rd=V(254)+V(255)+S(62,2), item=lambda ctx: ("st",)),
                  I("s_nop 1", "nop", n=2),
                  valu("v_accvgpr_read_b32 v253,a254", A(254), V(253)),
                  salu("s_add_u32 s62,s62,0x100000\ns_addc_u32 s63,s63,0", S(62,2), S(62,2)),
                  I("global_store_dword v254,v253,s[62:63]", "vmem", rd=V(254)+V(253)+S(62,2), item=lambda ctx: ("st",))])
    def add(self, seq, sched=False, **kw):
        if sched: seq = schedule(seq, **kw)
        seq, self.pend = insert_lgkm(seq, self.pend)
        seq, self.hist, _ = fix_hazards(seq, self.hist)
        self.main += seq
    def label(self, name):
        self.main.append(I(f"{self.lbl(name)}:", "label"))
    def add_ool(self, name, seq, back):
        s = [I(f"{self.lbl(name)}:", "label")] + [I("s_nop 1", "nop", n=2)] + list(seq)
        s, _, _ = fix_hazards(s, [])
        s += [I("s_nop 1", "nop", n=2), I(f"s_branch {self.lbl(back)}", "branch")]
        self.ool += s

def alt_anchor(p, name, cmp_txt, rd, wr, seq, skip=()):
    back = name + "_r"
    p.add_ool(name, seq, back)
    g = [I(cmp_txt + f"\ns_cbranch_scc1 {p.lbl(name)}", "branch", rd=list(rd), wr=list(wr), anchor=True)]
    g += list(skip)
    g += [I(f"{p.lbl(back)}:", "label", anchor=True, wr=list(wr))]
    return g

def lane_consts(w):
    L = []
    L.append(valu("v_and_b32 v255,63,v0", V(0), V(255)))
    L.append(valu(f"v_lshlrev_b32 v{vAL},4,v255", V(255), V(vAL)))
    L.append(valu(f"v_add_u32 v{vAL},{R1},v{vAL}", V(vAL), V(vAL)))
    return L
def lane_from_AL(dst):
    return [valu(f"v_subrev_u32 v{dst},{R1},v{vAL}", V(vAL), V(dst)),
            valu(f"v_lshrrev_b32 v{dst},4,v{dst}", V(dst), V(dst))]
def calc_aW(dst, lane, t0, t1):
    return [valu(f"v_bfe_u32 v{t0},v{lane},2,3", V(lane), V(t0)),
            valu(f"v_mul_u32_u24 v{dst},{PC},v{t0}", V(t0), V(dst)),
            valu(f"v_lshrrev_b32 v{t0},5,v{lane}", V(lane), V(t0)),
            valu(f"v_lshlrev_b32 v{t0},8,v{t0}", V(t0), V(t0)),
            valu(f"v_and_b32 v{t1},3,v{lane}", V(lane), V(t1)),
            valu(f"v_lshlrev_b32 v{t1},3,v{t1}", V(t1), V(t1)),
            valu(f"v_add3_u32 v{dst},v{dst},v{t0},v{t1}", V(dst)+V(t0)+V(t1), V(dst))]
def calc_aV(dst, lane, t0, t1):
    return [valu(f"v_lshrrev_b32 v{t0},2,v{lane}", V(lane), V(t0)),
            valu(f"v_mul_u32_u24 v{dst},{PC},v{t0}", V(t0), V(dst)),
            valu(f"v_and_b32 v{t1},3,v{lane}", V(lane), V(t1)),
            valu(f"v_lshl_add_u32 v{dst},v{t1},3,v{dst}", V(t1)+V(dst), V(dst))]
def calc_aK(dst, lane, t0, t1):
    return [valu(f"v_and_b32 v{t0},15,v{lane}", V(lane), V(t0)),
            valu(f"v_mul_u32_u24 v{dst},{PC},v{t0}", V(t0), V(dst)),
            valu(f"v_lshrrev_b32 v{t1},4,v{lane}", V(lane), V(t1)),
            valu(f"v_lshl_add_u32 v{dst},v{t1},4,v{dst}", V(t1)+V(dst), V(dst))]
def calc_pat(dst4, lane, t0, t1, tshift, jstep):
    L = [valu(f"v_lshrrev_b32 v{t0},4,v{lane}", V(lane), V(t0)),
         valu(f"v_lshlrev_b32 v{t0},{tshift},v{t0}", V(t0), V(t0)),
         valu(f"v_and_b32 v{t1},15,v{lane}", V(lane), V(t1)),
         valu(f"v_lshl_add_u32 v{dst4},v{t1},4,v{t0}", V(t0)+V(t1), V(dst4))]
    for j in range(1, 4):
        L.append(valu(f"v_add_u32 v{dst4+j},{j*jstep},v{dst4}", V(dst4), V(dst4+j)))
    return L
PAT_WQ = (17, 8192-256); PAT_KV = (12, 0); PAT_WO = (14, 1024-256)

def add64(dst, src, lit):
    return [salu(f"s_add_u32 s{dst},s{src},{lit}\ns_addc_u32 s{dst+1},s{src+1},0", S(src,2), S(dst,2))]
def add64s(dst, src, sreg):
    return [salu(f"s_add_u32 s{dst},s{src},s{sreg}\ns_addc_u32 s{dst+1},s{src+1},0", S(src,2)+S(sreg), S(dst,2))]

def spread(L, w, start, step):
    k = 0
    for i in L:
        if i.kind == "dma":
            i.meta["min_rel"] = start + w*(step//4) + k*step; i.meta["dl_rel"] = i.meta["min_rel"] + 4; k += 1
    return L
def dma_item_static(w, slot, vpat, sbase, item=None):
    m0 = lambda j: slot*SL + (4*w + j)*PC - 256*j
    L = [salu(f"s_mov_b32 m0,{m0(0)}", [], ["m0"])]
    for j in range(4):
        L.append(dma_next(vpat+j, sbase, 256*j, f"s_mov_b32 m0,{m0(j+1)}" if j < 3 else None, item=item))
    return L
def dma_item_dyn(w, sslot, vpat0, npat, sbase, item=None):
    L = [salu(f"s_add_u32 m0,s{sslot},{4*w*PC}", S(sslot), ["m0"])]
    for j in range(4):
        L.append(dma_next(vpat0 + (j if npat == 4 else 0), sbase, 256*j, f"s_add_u32 m0,m0,{PC-256}" if j < 3 else None, item=item))
    return L

def proj_reads(kind, slot, blk, sg):
    L = []
    base = (slot & 3)*SL
    for dtl in range(2):
        dt = 2*blk + dtl
        for p in range(2):
            for e in range(2):
                if kind == "W": off = base + e*8*PC + p*512 + dt*32
                else:           off = base + (2*p+e)*256 + dt*32
                L.append(ds_tr(pool(sg, 2*dtl+p) + 2*e, vAX, off))
    return L
def proj_mfmas(w, blk, sg, first, Bf, B13f):
    L = []
    for dtl in range(2):
        dt = 2*blk + dtl
        for qt in range(3):
            for p in range(2):
                L.append(mfma(('v', acc(dt, qt)), ('a', pool(sg, 2*dtl+p)), ('a', Bf(qt, p)), 0 if (first and p == 0) else None))
        if blk == w:
            for p in range(2):
                L.append(mfma(('v', acc13(dtl)), ('a', pool(sg, 2*dtl+p)), ('a', B13f(p)), 0 if (first and p == 0) else None))
    return L

PREFETCH = int(os.environ.get("PF", "1"))
sPF = 38
STG = 104
def xload_ops(w, c):
    L = []
    if "nox" in EXPT:
        return [I("s_nop 0", "salu", item=None)] if False else []
    for qt in range(3):
        for pp in range(2):
            s = 2*c+pp
            L.append(I(f"global_load_dwordx4 a[{XF(s,qt)}:{XF(s,qt)+3}],v254,s[{XB[qt]}:{XB[qt]+1}] offset:{s*64} nt", "vmem",
                       rd=V(254)+S(XB[qt],2)+["VMORD"], wr=A(XF(s,qt),4)+["VMORD"], item=lambda ctx, c=c: ("x", c), dl_rel=16))
    return L
XB = [40, 42, 44, 46]
def tlb_touch(w):
    if PREFETCH != 2: return []
    base, size = [(sK0, 524288 - 4096), (sV0, 524288 - 4096), (sWO, 524288 - 16384), (sWS, 212992 - 4)][w]
    L = [valu(f"v_subrev_u32 v255,{R1},v{vAL}", V(vAL), V(255)), valu("v_and_b32 v255,16,v255", V(255), V(255)),
         valu("v_lshrrev_b32 v255,4,v255", V(255), V(255)), valu(f"v_mul_u32_u24 v255,{size},v255", V(255), V(255))]
    if w == 3: L.append(valu(f"v_add_u32 v255,{R1},v255", V(255), V(255)))
    L.append(I(f"global_load_dword a253,v255,s[{base}:{base+1}]", "vmem", rd=V(255)+S(base,2)+["VMORD"], wr=A(253)+["VMORD"],
               item=lambda ctx: ("pf",), dl_rel=30))
    return L
def prefetch_ops(w, isV):
    if PREFETCH != 1: return []
    src = sV0 if isV else sK0
    L = [salu(f"s_lshl_b32 s{sT2},s{sPass},17", S(sPass), S(sT2))]
    L += add64s(sPF, src, sT2)
    L += add64(sPF, sPF, 31744*w)
    L += [valu(f"v_subrev_u32 v255,{R1},v{vAL}", V(vAL), V(255)), valu("v_lshlrev_b32 v255,5,v255", V(255), V(255))]
    L.append(I(f"global_load_dword a253,v255,s[{sPF}:{sPF+1}]", "vmem", rd=V(255)+S(sPF,2)+["VMORD"], wr=A(253)+["VMORD"],
               item=lambda ctx: ("pf",), dl_rel=30))
    return L
TOUCH = int(os.environ.get("TOUCH", "0"))
sWQT, sWOT, sTB = 64, 66, 68
def touch_slice(w, sbase, head, rowshift, tmp=255):
    if not TOUCH: return []
    L = []
    if head is None:
        L.append(salu(f"s_add_u32 s{sT1},s{sPass},2\ns_and_b32 s{sT1},s{sT1},3\ns_lshl_b32 s{sT1},s{sT1},8", S(sPass), S(sT1)))
        L += add64s(sTB, sbase, sT1)
    else:
        L += add64(sTB, sbase, 256*head)
    L += [valu(f"v_add_u32 v{tmp},{(1024*(w & 1) - R1) & 0xffffffff},v{vAL}", V(vAL), V(tmp)),
          valu(f"v_lshlrev_b32 v{tmp},{rowshift-4},v{tmp}", V(tmp), V(tmp)),
          I(f"global_load_dword a253,v{tmp},s[{sTB}:{sTB+1}] offset:{128*(w >> 1)}", "vmem", rd=V(tmp)+S(sTB,2)+["VMORD"],
            wr=A(253)+["VMORD"], item=lambda ctx: ("touch",), dl_rel=24)]
    return L
def stage(qt, u): return STG + 16*qt + 4*u
sMask = 36
def epiC_cvt(w):
    L = []
    for u in range(4):
        for qt in range(3):
            L += pack_pair(stage(qt, u), acc(2*u, qt), acc(2*u+1, qt))
    L += pack_pair(STG+48, acc13(0), acc13(1))
    return L
def epiC_stores(w, masked, spread):
    L = []; k = 0
    def st(reg, off):
        nonlocal k
        pol = " nt" if "stnt" in EXPT else (" sc1" if "stsc1" in EXPT else (" sc0 sc1" if "stsc01" in EXPT else ""))
        t = f"global_store_dwordx4 v{vAL},v[{reg}:{reg+3}],s[{sST}:{sST+1}] offset:{off}{pol}"
        if masked and "nomask" not in EXPT: t = f"s_mov_b64 exec,s[{sMask}:{sMask+1}]\n{t}\ns_mov_b64 exec,-1"
        meta = dict(store=True, item=(lambda ctx: None if ctx["pass"] == 0 else ("st",)) if (masked and "nomask" not in EXPT) else (lambda ctx: ("st",)))
        if spread: meta.update(min_rel=8 + 22*(k & 1), dl_rel=12 + 22*(k & 1))
        k += 1
        return I(t, "vmem", rd=V(vAL)+V(reg,4)+S(sST,2)+S(sMask,2)+["VMORD"], wr=["VMORD"], **meta)
    for qt in range(3):
        L += add64(sST, sWS, (3*w+qt)*4096)
        for u in range(4): L.append(st(stage(qt, u), u*1024))
    L += add64(sST, sWS, 12*4096)
    L.append(st(STG+48, w*1024))
    return L

def pass_body(p, phase, pass0=False, extra=None):
    w = p.w
    kind = "W" if phase == "A" else "V"
    R = []
    def Bf(c):
        if phase == "A": return lambda qt, pp: XF(2*c+pp, qt)
        hh = c >> 1
        return lambda qt, pp: T((hh+1) & 3, 2*(c & 1)+pp, qt)
    def b13_reads(c):
        L = []
        for pp in range(2):
            if phase == "A": L.append(ds_r128(B13 + 8*(c & 1) + 4*pp, vX13, 1024*(2*c+pp)))
            else: L.append(ds_r128(B13 + 8*(c & 1) + 4*pp, vAL, OFF_Q13[c >> 1] + 1024*(2*(c & 1)+pp)))
        return L
    B13f = lambda c: (lambda pp: B13 + 8*(c & 1) + 4*pp)
    def dma_for(c):
        ch = c - 1
        L = []
        if phase == "A" and pass0:
            if c+2 <= 6:
                L += add64(sB, sWQ, (c+2)*64*8192) + dma_item_static(w, c+2, vPat, sB, item=lambda ctx, c=c: ("wq", 0, c+2))
            if c+2 <= 7: L += xload_ops(w, c+2)
            L += add64(sB, sWQ, 256 + ch*64*8192)
            item = lambda ctx, ch=ch: ("wq", 1, ch)
            if c == 8: return L
        elif phase == "A":
            altL = []
            if c == 1:
                altL += [valu(f"v_subrev_u32 v255,{R1},v{vAL}", V(vAL), V(255)),
                         valu(f"v_and_b32 v{vPat},0xf0,v255", V(255), V(vPat)),
                         valu(f"v_lshrrev_b32 v255,8,v255", V(255), V(255)),
                         valu(f"v_lshl_add_u32 v{vPat},v255,12,v{vPat}", V(255)+V(vPat), V(vPat))]
                altL += [valu(f"v_mov_b32 v{vPat+j},v{vPat}", V(vPat), V(vPat+j)) for j in range(1, 4)]
            if c <= 7:
                kv = ["K0","K1","V0","K2","V1","K3","V2"][ch]
                src = sK0 if kv[0] == "K" else sV0
                altL += add64(sB, src, int(kv[1])*16384)
            else:
                altL += add64(sB, sK0, 0)
            norm = add64(sB, sWQ, 256 + ch*64*8192)
            L += alt_anchor(p, f"Aalt{c}", f"s_cmp_eq_u32 s{sPass},3", S(sPass), S(sB,2)+V(vPat,4)+V(255), altL,
                            skip=[I(x.txt, "salu", rd=x.rd, wr=x.wr, anchor=True) for x in norm])
            item = lambda ctx, ch=ch: ("wq", ctx["pass"]+1, ch) if ctx["pass"] < 3 else [("K",0),("K",1),("V",0),("K",2),("V",1),("K",3),("V",2),("dummy",)][ch]
        else:
            altL = []
            if c == 1:
                altL += [valu(f"v_mov_b32 v{vPat+j},0", [], V(vPat+j)) for j in range(4)]
            altL += add64(sB, sWO, 0)
            norm = add64(sB, sWO, 256 + ch*64*1024)
            L += alt_anchor(p, f"Calt{c}", f"s_cmp_eq_u32 s{sPass},3", S(sPass), S(sB,2)+V(vPat,4), altL,
                            skip=[I(x.txt, "salu", rd=x.rd, wr=x.wr, anchor=True) for x in norm])
            item = lambda ctx, ch=ch: ("wo", ctx["pass"]+1, ch) if ctx["pass"] < 3 else ("dummy",)
        D = dma_item_static(w, ch & 7, vPat, sB, item=item)
        if c == 8 and not pass0: return L
        if not pass0: D = spread(D, w, 3, 11)
        return L + D
    def tail_item():
        if phase == "A": item = lambda ctx: ("wq", ctx["pass"], 7)
        else: item = lambda ctx: ("wo", ctx["pass"], 7)
        return spread(dma_item_static(w, 7, vPat, sB, item=item), w, 2, 9)
    def bar_for(c):
        if phase == "A":
            need = lambda ctx, c=c: [("wq", ctx["pass"], c)] if c < 8 else ([("wq", ctx["pass"]+1, 0)] if ctx["pass"] < 3 else [("K",0)])
        else:
            need = lambda ctx, c=c: [("wo", ctx["pass"], c)] if c < 8 else ([("wo", ctx["pass"]+1, 0)] if ctx["pass"] < 3 else [])
        b = barrier(vm=24, needs=need)
        if pass0:
            if c <= 7:
                N0 = P0N[c]
                return barrier(vm=N0, needs=lambda ctx, c=c: [("wq", 0, c), ("x", c)])
            return b
        if False:
            N0 = 66 - 6*c
            wait_alt = [I(f"s_waitcnt vmcnt({N0}) lgkmcnt(0)", "wait", lgkm=0, vm=N0, needs=lambda ctx, c=c: [("wq", 0, c), ("x", c)])]
            g = alt_anchor(p, f"P0w{c}", f"s_cmp_eq_u32 s{sPass},0", S(sPass), ["LDSF", "DSORD"], wait_alt, skip=[b[0]])
            return g + [b[1]]
        return b
    if not pass0: R += tail_item()
    for c in range(8):
        slot = c
        if c > 0: R += proj_mfmas(w, 3, 1, c-1 == 0, Bf(c-1), B13f(c-1))
        R += proj_reads(kind, slot, 1, 1)
        R += proj_mfmas(w, 0, 0, c == 0, Bf(c), B13f(c))
        R += proj_reads(kind, slot, 2, 0)
        R += proj_mfmas(w, 1, 1, c == 0, Bf(c), B13f(c))
        R += proj_reads(kind, slot, 3, 1)
        R += proj_mfmas(w, 2, 0, c == 0, Bf(c), B13f(c))
        R += bar_for(c+1)
        nslot = (c+1) & 7
        if (c+1) & 3 == 0:
            d = 4*SL if c+1 == 4 else -4*SL
            R.append(valu(f"v_add_u32 v{vAX},{d & 0xffffffff},v{vAX}", V(vAX), V(vAX)))
        rr_ = proj_reads(kind, nslot, 0, 0)
        R += need_end(rr_) if c == 7 else rr_
        rr_ = b13_reads((c+1) & 7)
        R += need_end(rr_) if c == 7 else rr_
        R += dma_for(c+1)
        if extra and c in extra: R += extra[c]
        if phase == "A":
            if pass0 and c+1 in (6, 7): R += prefetch_ops(w, c+1 == 7)
            if not pass0 and c+1 in (1, 4): R += prefetch_ops(w, c+1 == 4)
            if c+1 == 3: R += touch_slice(w, sWQT, 2 if pass0 else None, 13)
        else:
            if c+1 == 3: R += touch_slice(w, sWOT, None, 10)
    R += proj_mfmas(w, 3, 1, False, Bf(7), B13f(7))
    return R, b13_reads, Bf

def p0_counts():
    ops = ["x13"]*4 + ["wq0"]*4 + ["x0"]*6 + ["wq1"]*4 + ["x1"]*6
    N = {}
    def need(c):
        idx = max(i for i, o in enumerate(ops) if o in (f"wq{c}", f"x{c}"))
        return min(63, len(ops)-1-idx)
    N[0] = need(0)
    for c in range(0, 8):
        if c+2 <= 6: ops += [f"wq{c+2}"]*4
        if c+2 <= 7: ops += [f"x{c+2}"]*6
        ops += [f"wq{c+7}"]*4
        if PREFETCH and c in (6, 7): ops += ["pf"]
        if c+1 <= 7: N[c+1] = need(c+1)
    return N
P0N = p0_counts()
vX13, vXR, vXP, vX13P = 254, 104, 108, 110
def x_dma(w, c, which, slot):
    pieces = [(0,0),(0,1),(1,0),(1,1)] if which == "A" else [(2,0),(2,1)]
    dest = lambda qt, j: slot*SL + ((4*w + 2*qt + j) if which == "A" else (2*w + j))*1024
    L = [salu(f"s_mov_b32 m0,{dest(*pieces[0])}", [], ["m0"])]
    for k, (qt, j) in enumerate(pieces):
        nxt = f"s_mov_b32 m0,{dest(*pieces[k+1])}" if k+1 < len(pieces) else None
        L.append(dma_next(vXP+j, XB[qt], 0, nxt, item=lambda ctx, c=c, which=which: ("x"+which, c)))
    for qt in sorted(set(q for q, _ in pieces)): L += add64(XB[qt], XB[qt], 128)
    return L
def x_reads(w, c):
    sA, sB_ = (3*c+1) % 8, (3*c+2) % 8
    L = []
    for qt in range(3):
        tb = sA*SL + (4*w + 2*qt)*1024 if qt < 2 else sB_*SL + 2*w*1024
        hi = 1 if tb >= 4*SL else 0
        for pp in range(2):
            L.append(ds_r128(XF(2*c+pp, qt), vXR + 2*hi + pp, tb - hi*4*SL))
    return L
def p0_load(w, q):
    if q >= 24:
        ch = q - 24
        return add64(sB, sWQ, 256 + ch*64*8192) + dma_item_static(w, q % 8, vPat, sB, item=lambda ctx, ch=ch: ("wq", 1, ch))
    c, r = divmod(q, 3)
    if r == 0: return add64(sB, sWQ, c*64*8192) + dma_item_static(w, q % 8, vPat, sB, item=lambda ctx, c=c: ("wq", 0, c))
    return x_dma(w, c, "A" if r == 1 else "B", q % 8)
def pass0_body(p):
    w = p.w; R = []
    half = [0]
    def reads(c, blk, sg):
        slot = (3*c) % 8 if c < 8 else 0
        L = []
        h = slot >> 2
        if h != half[0]:
            d = 4*SL if h else -4*SL
            L.append(valu(f"v_add_u32 v{vAX},{d & 0xffffffff},v{vAX}", V(vAX), V(vAX))); half[0] = h
        return L + proj_reads("W", slot, blk, sg)
    b13 = lambda c: [ds_r128(B13 + 8*(c & 1) + 4*pp, vX13, 1024*(2*c+pp)) for pp in range(2)]
    Bf = lambda c: (lambda qt, pp: XF(2*c+pp, qt))
    B13f = lambda c: (lambda pp: B13 + 8*(c & 1) + 4*pp)
    first = reads(0, 0, 0) + x_reads(w, 0) + b13(0)
    for c in range(8):
        if c > 0: R += proj_mfmas(w, 3, 1, c-1 == 0, Bf(c-1), B13f(c-1))
        R += reads(c, 1, 1)
        R += proj_mfmas(w, 0, 0, c == 0, Bf(c), B13f(c))
        R += reads(c, 2, 0)
        R += proj_mfmas(w, 1, 1, c == 0, Bf(c), B13f(c))
        R += reads(c, 3, 1)
        R += proj_mfmas(w, 2, 0, c == 0, Bf(c), B13f(c))
        n = c + 1
        if n <= 7: need = lambda ctx, n=n: [("wq", 0, n), ("xA", n), ("xB", n)]
        else: need = lambda ctx: [("wq", 1, 0)]
        R += barrier(vm=0, needs=need)
        rr_ = reads(n, 0, 0) + (x_reads(w, n) if n <= 7 else []) + b13(n & 7)
        R += need_end(rr_) if n == 8 else rr_
        D = []
        for q in range(3*n+5, 3*n+8):
            if q <= 30: D += p0_load(w, q)
        R += spread(D, w, 2, 4)
        if n == 8: R += add64(sB, sWQ, 256 + 7*64*8192)
        if n in (6, 7): R += prefetch_ops(w, n == 7)
        if n == 3: R += touch_slice(w, sWQT, 2, 13)
        if n == 5: R += tlb_touch(w)
    R += proj_mfmas(w, 3, 1, False, Bf(7), B13f(7))
    return R, first

def swap_frag(r):
    return [perm32(r, r+2), perm32(r+1, r+3), perm16(r, r+2), perm16(r+1, r+3)]
def pack_pair(dst, a, b):
    return [vcvt(dst, a, a+1), vcvt(dst+1, a+2, a+3), vcvt(dst+2, b, b+1), vcvt(dst+3, b+2, b+3)]

def epiA_common(w):
    L = []
    ss = f"s{sScale}"
    for s in range(4):
        for qt in range(3):
            a, b = acc(2*s, qt), acc(2*s+1, qt)
            L += [vmul_s(a+r, ss) for r in range(4)] + [vmul_s(b+r, ss) for r in range(4)]
            L += pack_pair(a, a, b) + swap_frag(a)
    a, b = acc13(0), acc13(1)
    L += [vmul_s(a+r, ss) for r in range(4)] + [vmul_s(b+r, ss) for r in range(4)]
    L += pack_pair(a, a, b) + swap_frag(a)
    return L
def epiA_head(w, h):
    L = [ds_w128(vAL, acc13(0), OFF_Q13[h] + 1024*w)]
    for s in range(4):
        for qt in range(3):
            a = acc(2*s, qt)
            for r in range(4):
                if h < 3:
                    d = QT + 48*h + 12*s + 4*qt + r
                    L.append(valu(f"v_mov_b32 v{d},v{a+r}", V(a+r), V(d)))
                else:
                    L.append(accw(T(3, s, qt)+r, a+r))
    if h == 3:
        for hh in range(3):
            for i in range(48): L.append(accw(48*hh+i, QT+48*hh+i))
    return L

def Sreg(sset, t): return SREG + 16*sset + 4*t
def Preg(pset, qt, p): return PREG + 24*pset + 8*qt + 4*p
def Qf(qt, s): return T(0, s, qt)
def Q13f(s): return B13 + 4*s
def need_end(L):
    for i in L: i.meta["need_end"] = True
    return L
def k_reads(kt, sg):
    return [ds_r128(pool(sg, s), vAK, kt*256 + s*64) for s in range(4)]
def v_reads(pair, sg):
    L = []
    for dtl in range(2):
        dt = 2*pair + dtl
        for p in range(2):
            for e in range(2):
                L.append(ds_tr(pool(sg, 2*dtl+p) + 2*e, vAX, (2*p+e)*256 + dt*32))
    return L
def qk_block(w, kt, sg, sset, with13, cinit=True):
    L = []
    tiles = [0, 1, 2] + ([3] if with13 else [])
    for t in tiles:
        for s in range(4):
            Bop = Qf(t, s) if t < 3 else Q13f(s)
            C = None if s else (('v', CREG + 4*t) if cinit else 0)
            L.append(mfma(('v', Sreg(sset, t)), ('a', pool(sg, s)), ('a', Bop), C))
    return L
def softmax_block(w, kt, sset, pset, with13, p13par):
    L = []
    tiles = ([3] if with13 else []) + [0, 1, 2]
    for t in tiles:
        r = Sreg(sset, t)
        L += [vexp(r+i) for i in range(4)]
        if t < 3:
            d = Preg(pset, t, kt >> 1) + 2*(kt & 1)
            L += [vcvt(d, r, r+1), vcvt(d+1, r+2, r+3)]
        else:
            L += [vcvt(r, r, r+1), vcvt(r+1, r+2, r+3)]
            L.append(ds_w64(vAL, r, OFF_P13 + 2048*p13par + 1024*(kt >> 1) + 8*(kt & 1)))
    return L
def pv_block(w, pair, sg, pset, first):
    L = []
    for dtl in range(2):
        dt = 2*pair + dtl
        for qt in range(3):
            for p in range(2):
                L.append(mfma(('v', acc(dt, qt)), ('a', pool(sg, 2*dtl+p)), ('v', Preg(pset, qt, p)), 0 if (first and p == 0) else None))
        if pair == w:
            for p in range(2):
                L.append(mfma(('v', acc13(dtl)), ('a', pool(sg, 2*dtl+p)), ('a', P13+4*p), 0 if (first and p == 0) else None))
    return L
def sum_block(pset, first):
    L = []
    for t in range(4):
        for p in range(2):
            Bop = ('v', Preg(pset, t, p)) if t < 3 else ('a', P13+4*p)
            L.append(mfma(('v', LACC+4*t), ('a', ONES), Bop, 0 if (first and p == 0) else None))
    return L
def p13_reads(par):
    return [ds_r128(P13+4*p, vAL, OFF_P13 + 2048*par + 1024*p) for p in range(2)]

def att_tail_dma(p, par, name):
    w = p.w
    sKold = sKa if ((par+1) & 1) == 0 else sKb
    sKnew = sKa if (par & 1) == 0 else sKb
    sVold = sVa if par == 0 else sVb
    sVnew = sVb if par == 0 else sVa
    L = []
    L.append(valu(f"v_add_u32 v{vAK},s{sKnew},v{vK0}", S(sKnew)+V(vK0), V(vAK)))
    L.append(valu(f"v_add_u32 v{vAX},s{sVnew},v{vV0}", S(sVnew)+V(vV0), V(vAX)))
    altK = []
    altK += [valu(f"v_subrev_u32 v255,{R1},v{vAL}", V(vAL), V(255)),
             valu(f"v_and_b32 v{vPat},0xf0,v255", V(255), V(vPat)),
             valu(f"v_lshrrev_b32 v255,8,v255", V(255), V(255)),
             valu(f"v_lshl_add_u32 v{vPat},v255,14,v{vPat}", V(255)+V(vPat), V(vPat))]
    altK += [valu(f"v_add_u32 v{vPat+j},{j*PAT_WO[1]},v{vPat}", V(vPat), V(vPat+j)) for j in range(1, 4)]
    altK += [salu(f"s_mul_hi_u32 s{sT0},s{sKold},{(1<<32)//SL+1}", S(sKold), S(sT0)),
             salu(f"s_lshl_b32 s{sT0},s{sT0},16", S(sT0), S(sT0))] + add64s(sB, sWO, sT0)
    altV = []
    altV += [valu(f"v_subrev_u32 v255,{R1},v{vAL}", V(vAL), V(255)),
             valu(f"v_and_b32 v{vPatV},0xf0,v255", V(255), V(vPatV)),
             valu(f"v_lshrrev_b32 v255,8,v255", V(255), V(255)),
             valu(f"v_lshl_add_u32 v{vPatV},v255,14,v{vPatV}", V(255)+V(vPatV), V(vPatV))]
    altV += [valu(f"v_add_u32 v{vPatV+j},{j*PAT_WO[1]},v{vPatV}", V(vPatV), V(vPatV+j)) for j in range(1, 4)]
    altV += [salu(f"s_mul_hi_u32 s{sT0},s{sVold},{(1<<32)//SL+1}", S(sVold), S(sT0)),
             salu(f"s_lshl_b32 s{sT0},s{sT0},16", S(sT0), S(sT0))] + add64s(sVB, sWO, sT0)
    altV_guard = [I(f"s_cmp_ge_u32 s{sCnt},29\ns_cbranch_scc0 {p.lbl(name+'K_r')}", "branch")]
    L = alt_anchor(p, name+"K", f"s_cmp_ge_u32 s{sCnt},28", S(sCnt)+S(sKold)+S(sVold)+S(sWO,2),
                   S(sB,2)+V(vPat,4)+V(255)+S(sT0)+S(sVB,2)+V(vPatV,4), altK + altV_guard + altV) + L
    L += [salu(f"s_mov_b32 s{sKrel},s{sKold}", S(sKold), S(sKrel)), salu(f"s_mov_b32 s{sVrel},s{sVold}", S(sVold), S(sVrel))]
    kc = 3*SL if sKold == sKa else 6*SL
    vc = 8*SL if sVold == sVa else 11*SL
    L.append(salu(f"s_sub_u32 s{sKold},{kc},s{sKold}", S(sKold), S(sKold)))
    L.append(salu(f"s_sub_u32 s{sVold},{vc},s{sVold}", S(sVold), S(sVold)))
    L.append(salu(f"s_add_u32 s{sCnt},s{sCnt},1", S(sCnt), S(sCnt)))
    return L
sKrel, sVrel = 48, 49
def att_dma(p, span):
    w = p.w
    itemK = lambda ctx: ("K", ctx["nb"]+4) if ctx["nb"]+4 <= 31 else ("wo", 0, [0,1,3,5][(ctx["nb"]+4) & 3])
    itemV = lambda ctx: ("V", ctx["nb"]+3) if ctx["nb"]+3 <= 31 else ("wo", 0, [2,4,6,7][(ctx["nb"]+3) & 3])
    D = dma_item_dyn(w, sKrel, vPat, 4, sB, item=itemK) + add64(sB, sB, 16384)
    D += dma_item_dyn(w, sVrel, vPatV, 4, sVB, item=itemV) + add64(sVB, sVB, 16384)
    return spread(D, w, 2, span//8)

def att_bar():
    need = lambda ctx: [x for x in (("K", ctx["nb"]+1) if ctx["nb"]+1 <= 31 else None, ("V", ctx["nb"])) if x]
    b = barrier(vm=16, needs=need)
    b[0].meta["isattbar"] = True
    if "bartime" in EXPT:
        pre = I("s_memtime s[50:51]", "salu", anchor=True, wr=["LDSF"])
        mid = I("s_memtime s[52:53]\ns_waitcnt lgkmcnt(0)", "salu", anchor=True, wr=["LDSF"])
        post = I("s_memtime s[56:57]\ns_waitcnt lgkmcnt(0)\ns_sub_u32 s50,s52,s50\ns_add_u32 s54,s54,s50\ns_sub_u32 s56,s56,s52\ns_add_u32 s55,s55,s56", "salu", anchor=True, wr=["LDSF"])
        return [pre, b[0], mid, b[1], post]
    return b

def att_pro(p):
    w = p.w
    R = []
    R += k_reads(0, 1)
    R += qk_block(w, 0, 1, 1, True, cinit=False)
    kt0 = w & 3
    R += k_reads(kt0, 0)
    for t in range(4):
        r = Sreg(1, t); c = CREG + 4*t
        R.append(valu(f"v_max3_f32 v{c},v{r},v{r+1},v{r+2}", V(r,3), V(c)))
        R.append(valu(f"v_max_f32 v{c},v{c},v{r+3}", V(c)+V(r+3), V(c)))
        R.append(valu(f"v_mov_b32 v{c+1},v{c}", V(c), V(c+1)))
        R.append(perm16(c, c+1))
        R.append(valu(f"v_max_f32 v{c},v{c},v{c+1}", V(c,2), V(c)))
        R.append(valu(f"v_mov_b32 v{c+1},v{c}", V(c), V(c+1)))
        R.append(perm32(c, c+1))
        R.append(valu(f"v_max_f32 v{c},v{c},v{c+1}", V(c,2), V(c)))
        R.append(valu(f"v_mul_f32 v{c},-1.0,v{c}", V(c), V(c)))
        for i in range(1, 4): R.append(valu(f"v_mov_b32 v{c+i},v{c}", V(c), V(c+i)))
    for j in range(4):
        kt = (w + j) & 3
        if j < 3: R += k_reads((w+j+1) & 3, (j+1) & 1)
        R += qk_block(w, kt, j & 1, j & 1, j == 0)
        R += softmax_block(w, kt, j & 1, 0, j == 0, 0)
    R += att_bar()
    R += att_tail_dma(p, 1, "Pro")
    R += need_end(k_reads(w & 3, 0))
    return R

def expt_filter(R):
    out = []
    for i in R:
        if "noexp" in EXPT and i.kind == "trans": continue
        if "nocvt" in EXPT and i.txt.startswith("CV"): continue
        if "nodma" in EXPT and i.kind == "dma": continue
        if "nobar" in EXPT and i.kind == "bar": continue
        if "nods" in EXPT and i.kind == "dsr": continue
        if "nodsw" in EXPT and i.kind == "dsw": continue
        if "novalu" in EXPT and i.kind == "valu": continue
        if "nosalu" in EXPT and i.kind == "salu" and "m0" in i.wr: continue
        if "noalt" in EXPT and i.kind in ("branch", "label"): continue
        out.append(i)
    return out
def att_iter(p, par, first, name):
    if "Aonly" in EXPT: return att_iter_(p, par, first, name)
    return expt_filter(att_iter_(p, par, first, name))
def att_iter_(p, par, first, name):
    w = p.w
    R = []
    R += p13_reads(par)
    R += att_dma(p, 80)
    for j in range(4):
        kt = (w + j) & 3
        pair = (w + 1 + j) & 3
        R += v_reads(pair, 1)
        R += qk_block(w, kt, 0, j & 1, j == 0)
        if j < 3: R += k_reads((w+j+1) & 3, 0)
        R += softmax_block(w, kt, j & 1, par ^ 1, j == 0, par ^ 1)
        if j == 3:
            R += att_bar()
            R += att_tail_dma(p, par, name)
            R += need_end(k_reads(w & 3, 0))
        R += pv_block(w, pair, 1, par, first)
    R += sum_block(par, first)
    return R

def att_last(p):
    w = p.w; par = 1
    R = []
    R += p13_reads(par)
    R += att_dma(p, 48)
    R += v_reads((w+1) & 3, 1)
    for j in range(4):
        pair = (w + 1 + j) & 3
        sg = (j + 1) & 1
        if j < 3: R += v_reads((w+2+j) & 3, j & 1)
        R += pv_block(w, pair, sg, par, False)
    R += sum_block(par, False)
    return R

def epiB_common(p):
    L = []
    rl = vT
    for t in range(4):
        L.append(valu(f"v_rcp_f32 v{rl+t},v{LACC+4*t}", V(LACC+4*t), V(rl+t), kind="trans"))
    for s in range(4):
        for qt in range(3):
            a, b = acc(2*s, qt), acc(2*s+1, qt)
            L += [vmul_s(a+r, f"v{rl+qt}") for r in range(4)] + [vmul_s(b+r, f"v{rl+qt}") for r in range(4)]
            L += pack_pair(a, a, b)
    a, b = acc13(0), acc13(1)
    L += [vmul_s(a+r, f"v{rl+3}") for r in range(4)] + [vmul_s(b+r, f"v{rl+3}") for r in range(4)]
    L += pack_pair(a, a, b)
    return L
def epiB_head(w, h):
    L = [ds_w128(vAL, acc13(0), OFF_Q13[h] + 1024*w)]
    dst = (h+1) & 3
    if h < 3:
        for i in range(48): L.append(accm(i, 48*dst+i))
    for s in range(4):
        for qt in range(3):
            for r in range(4): L.append(accw(T(dst, s, qt)+r, acc(2*s, qt)+r))
    return L
def q13_reads(h):
    return [ds_r128(Q13f(s), vAL, OFF_Q13[h] + 1024*s) for s in range(4)]

def epiC(w):
    L = []
    for qt in range(3):
        Tq = 3*w + qt
        L += add64(sST, sWS, Tq*4096)
        for u in range(4):
            a, b = acc(2*u, qt), acc(2*u+1, qt)
            L += pack_pair(a, a, b)
            L.append(I(f"global_store_dwordx4 v{vAL},v[{a}:{a+3}],s[{sST}:{sST+1}] offset:{u*1024}", "vmem",
                       rd=V(vAL)+V(a,4)+S(sST,2)+["VMORD"], wr=["VMORD"], store=True, item=lambda ctx: ("st",)))
    L += add64(sST, sWS, 12*4096)
    a, b = acc13(0), acc13(1)
    L += pack_pair(a, a, b)
    L.append(I(f"global_store_dwordx4 v{vAL},v[{a}:{a+3}],s[{sST}:{sST+1}] offset:{w*1024}", "vmem",
               rd=V(vAL)+V(a,4)+S(sST,2)+["VMORD"], wr=["VMORD"], store=True, item=lambda ctx: ("st",)))
    return L

def wave_program(w):
    p = Prog(w)
    if PROFILE:
        p.add([salu("s_mov_b32 s54,0", [], S(54)), salu("s_mov_b32 s55,0", [], S(55)), salu("s_mov_b32 s62,0", [], S(62)), valu("v_accvgpr_write_b32 a252,0", [], A(252)), valu("v_accvgpr_write_b32 a254,0", [], A(254))])
        p.stamp()
    P = []
    a = lambda t, rd=(), wr=(): P.append(salu(t, rd, wr))
    for d, s_ in ((sWQT, sWQ), (sWOT, sWO)):
        a(f"s_mov_b32 s{d},s{s_}", S(s_), S(d)); a(f"s_mov_b32 s{d+1},s{s_+1}", S(s_+1), S(d+1))
    a(f"s_and_b32 s{sT0},s2,7", ["s2"], S(sT0))
    a(f"s_lshr_b32 s{sT1},s2,3", ["s2"], S(sT1))
    a(f"s_lshr_b32 s{sT2},s{sT1},3", S(sT1), S(sT2))
    a(f"s_lshl_b32 s{sT0},s{sT0},2", S(sT0), S(sT0))
    a(f"s_add_u32 s{sT0},s{sT0},s{sT2}", S(sT0)+S(sT2), S(sT0))
    a(f"s_and_b32 s{sT1},s{sT1},7", S(sT1), S(sT1))
    a(f"s_mul_i32 s{sT2},s{sT0},212992", S(sT0), S(sT2)); P += add64s(sX, sX, sT2)
    a(f"s_lshl_b32 s{sT2},s{sT0},22", S(sT0), S(sT2))
    a(f"s_lshl_b32 s{sT3},s{sT1},19", S(sT1), S(sT3))
    a(f"s_add_u32 s{sT2},s{sT2},s{sT3}", S(sT2)+S(sT3), S(sT2))
    a(f"s_add_u32 s{sT2},s{sT2},{4*w*256}", S(sT2), S(sT2))
    if "kvl2" in EXPT:
        a(f"s_mov_b32 s{sT2},{4*w*256}", [], S(sT2))
    P += add64s(sK0, sK0, sT2); P += add64s(sV0, sV0, sT2)
    rowoff = 4*(w >> 1) + 8*(w & 1)
    a(f"s_lshl_b32 s{sT2},s{sT1},10", S(sT1), S(sT2))
    a(f"s_add_u32 s{sT2},s{sT2},{rowoff*8192}", S(sT2), S(sT2))
    P += add64s(sWQ, sWQ, sT2)
    a(f"s_add_u32 s{sT2},s{sT3},{4*w*1024}", S(sT3), S(sT2))
    P += add64s(sWO, sWO, sT2)
    a(f"s_and_b32 s{sT2},s{sT0},3", S(sT0), S(sT2))
    a(f"s_lshl_b32 s{sTB},s{sT2},20", S(sT2), S(sTB))
    a(f"s_lshl_b32 s{sTB+1},s{sT1},10", S(sT1), S(sTB+1))
    a(f"s_add_u32 s{sTB},s{sTB},s{sTB+1}", S(sTB,2), S(sTB))
    P += add64s(sWQT, sWQT, sTB)
    a(f"s_lshl_b32 s{sTB},s{sT2},17", S(sT2), S(sTB))
    a(f"s_add_u32 s{sTB},s{sTB},s{sT3}", S(sTB)+S(sT3), S(sTB))
    P += add64s(sWOT, sWOT, sTB)
    a(f"s_lshl_b32 s{sT2},s{sT0},3", S(sT0), S(sT2))
    a(f"s_add_u32 s{sT2},s{sT2},s{sT1}", S(sT2)+S(sT1), S(sT2))
    a(f"s_mul_i32 s{sT2},s{sT2},212992", S(sT2), S(sT2))
    P += add64s(sWS, sWS, sT2)
    a(f"s_sub_u32 s{sWS},s{sWS},{R1}", S(sWS), S(sWS))
    a(f"s_subb_u32 s{sWS+1},s{sWS+1},0", S(sWS+1), S(sWS+1))
    a(f"s_mov_b32 s{sScale},{f2u(SCALE):#x}", [], S(sScale))
    a(f"s_mov_b32 s{sThr},{f2u(2.0**40):#x}", [], S(sThr))
    a(f"s_mov_b32 s{sPass},0", [], S(sPass))
    P += lane_consts(w)
    P += calc_aW(vAX, 255, 0, 1)
    P += calc_pat(vPat, 255, 0, 1, *PAT_WQ)
    P += [valu("v_and_b32 v2,15,v255", V(255), V(2)), valu("v_lshlrev_b32 v2,10,v2", V(2), V(2)),
          valu("v_lshrrev_b32 v3,4,v255", V(255), V(3)), valu("v_lshl_add_u32 v2,v3,4,v2", V(2)+V(3), V(2))]
    for i in range(4): P.append(I(f"v_accvgpr_write_b32 a{ONES+i},s{sT3}", "valu", rd=S(sT3), wr=A(ONES+i)))
    P.insert(len(P)-4, salu(f"s_mov_b32 s{sT3},0x3f803f80", [], S(sT3)))
    if TOUCH:
        a(f"s_mul_i32 s{sT2},s{sT1},26624", S(sT1), S(sT2)); P += add64s(sTB, sX, sT2)
        P += [valu(f"v_subrev_u32 v4,{R1},v{vAL}", V(vAL), V(4)), valu("v_min_u32 v4,816,v4", V(4), V(4)),
              valu("v_lshlrev_b32 v4,3,v4", V(4), V(4)), valu(f"v_add_u32 v4,{6656*w},v4", V(4), V(4)),
              I(f"global_load_dword a253,v4,s[{sTB}:{sTB+1}]", "vmem", rd=V(4)+S(sTB,2)+["VMORD"], wr=A(253)+["VMORD"], item=lambda ctx: ("touch",))]
        P += touch_slice(w, sWQT, 0, 13, tmp=5) + touch_slice(w, sWQT, 1, 13, tmp=6)
    V_ = lambda t, rd, wr: P.append(valu(t, rd, wr))
    V_("v_lshrrev_b32 v4,3,v255", V(255), V(4)); V_("v_lshrrev_b32 v5,1,v4", V(4), V(5)); V_("v_and_b32 v6,7,v255", V(255), V(6))
    V_("v_xor_b32 v7,v5,v6", V(5)+V(6), V(7)); V_("v_lshlrev_b32 v7,4,v7", V(7), V(7)); V_(f"v_lshl_add_u32 v{vXP},v4,10,v7", V(4)+V(7), V(vXP))
    V_(f"v_xor_b32 v{vXP+1},64,v{vXP}", V(vXP), V(vXP+1)); V_(f"v_add_u32 v{vXP+1},8192,v{vXP+1}", V(vXP+1), V(vXP+1))
    V_("v_and_b32 v4,15,v255", V(255), V(4)); V_("v_lshrrev_b32 v5,4,v255", V(255), V(5)); V_("v_lshrrev_b32 v6,1,v4", V(4), V(6))
    V_("v_xor_b32 v7,v5,v6", V(5)+V(6), V(7)); V_("v_lshlrev_b32 v7,4,v7", V(7), V(7)); V_(f"v_lshl_add_u32 v{vXR},v4,7,v7", V(4)+V(7), V(vXR))
    V_(f"v_xor_b32 v{vXR+1},64,v{vXR}", V(vXR), V(vXR+1))
    V_(f"v_add_u32 v{vXR+2},{4*SL},v{vXR}", V(vXR), V(vXR+2)); V_(f"v_add_u32 v{vXR+3},{4*SL},v{vXR+1}", V(vXR+1), V(vXR+3))
    V_("v_lshrrev_b32 v6,2,v4", V(4), V(6)); V_("v_sub_u32 v6,4,v6", V(6), V(6)); V_("v_and_b32 v6,3,v6", V(6), V(6))
    V_("v_xor_b32 v7,v5,v6", V(5)+V(6), V(7)); V_("v_lshlrev_b32 v7,4,v7", V(7), V(7)); V_(f"v_lshl_add_u32 v{vX13},v4,6,v7", V(4)+V(7), V(vX13))
    V_(f"v_add_u32 v{vX13},{R1},v{vX13}", V(vX13), V(vX13))
    V_("v_lshrrev_b32 v4,2,v255", V(255), V(4)); V_("v_sub_u32 v6,4,v5", V(5), V(6)); V_("v_and_b32 v6,3,v6", V(6), V(6))
    V_("v_and_b32 v7,3,v255", V(255), V(7)); V_("v_xor_b32 v7,v6,v7", V(6)+V(7), V(7)); V_("v_lshlrev_b32 v7,4,v7", V(7), V(7))
    V_(f"v_lshl_add_u32 v{vX13P},v4,10,v7", V(4)+V(7), V(vX13P))
    for qt in range(3): P += add64(XB[qt], sX, (48*w + 16*qt)*1024)
    P += add64(XB[3], sX, 192*1024 + 256*w)
    for q in range(3): P += p0_load(w, q)
    P.append(salu(f"s_mov_b32 m0,{R1 + 4096*w}", [], ["m0"]))
    for i in range(4):
        P.append(dma_next(vX13P, XB[3], 64*i, f"s_mov_b32 m0,{R1 + 4096*w + (i+1)*(1024-64)}" if i < 3 else None, item=lambda ctx: ("x13",)))
    for q in range(3, 8): P += p0_load(w, q)
    p.add(P); p.stamp(); P = []
    P += barrier(vm=0, needs=lambda ctx: [("wq", 0, 0), ("xA", 0), ("xB", 0), ("x13",)])
    body0, first0 = pass0_body(p)
    bodyA, b13A, _ = pass_body(p, "A")
    P += first0
    p.add(P)
    p.add([I("LG 0", "wait", lgkm=0)])
    p.stamp()
    if "p0nodma" in EXPT: body0 = [i for i in body0 if i.kind != "dma"]
    p.add(body0 + epiA_common(w), sched=True)
    p.add(epiA_head(w, 0))
    p.add(add64(sWQ, sWQ, 256) + [salu(f"s_add_u32 s{sPass},s{sPass},1", S(sPass), S(sPass))])
    p.label("LA")
    p.add([I("LG 0", "wait", lgkm=0)])
    p.stamp()
    if "Aonly" in EXPT: bodyA = expt_filter(bodyA)
    p.add(bodyA + epiA_common(w), sched=True)
    for h in range(1, 4):
        if h < 3:
            p.add([salu(f"s_cmp_eq_u32 s{sPass},{h}", S(sPass), ["scc"]), I(f"s_cbranch_scc0 {p.lbl('EA%d'%(h+1))}", "branch", rd=["scc"])])
        p.add(epiA_head(w, h))
        if h < 3:
            p.add(add64(sWQ, sWQ, 256) + [salu(f"s_add_u32 s{sPass},s{sPass},1", S(sPass), S(sPass)),
                   I(f"s_branch {p.lbl('LA')}", "branch")])
            p.label(f"EA{h+1}")
    p.stamp()
    P = []
    P += lane_from_AL(vT)
    P += calc_aK(vK0, vT, vT+1, vT+2)
    P += calc_aV(vV0, vT, vT+1, vT+2)
    P += calc_pat(vPat, vT, vT+1, vT+2, *PAT_KV)
    P += [valu(f"v_mov_b32 v{vPatV+j},v{vPat}", V(vPat), V(vPatV+j)) for j in range(4)]
    P += [salu(f"s_mov_b32 s{sKa},0", [], S(sKa)), salu(f"s_mov_b32 s{sKb},{SL}", [], S(sKb)),
          salu(f"s_mov_b32 s{sVa},{2*SL}", [], S(sVa)), salu(f"s_mov_b32 s{sVb},{7*SL}", [], S(sVb)),
          salu(f"s_mov_b32 s{sCnt},0", [], S(sCnt)), salu(f"s_mov_b32 s{sHead},0", [], S(sHead))]
    P += add64(sB, sK0, 4*16384) + add64(sVB, sV0, 3*16384)
    P += barrier(vm=None)
    p.add(P)
    p.label("LB")
    for h in range(4):
        if h < 3:
            p.add([salu(f"s_cmp_eq_u32 s{sHead},{h}", S(sHead), ["scc"]), I(f"s_cbranch_scc0 {p.lbl('QB%d'%(h+1))}", "branch", rd=["scc"])])
        p.add(q13_reads(h))
        if h < 3:
            p.add([I(f"s_branch {p.lbl('QBX')}", "branch")]); p.label(f"QB{h+1}")
    p.label("QBX")
    p.add([I("LG 0", "wait", lgkm=0),
           valu(f"v_mov_b32 v{vAK},v{vK0}", V(vK0), V(vAK))])
    p.stamp()
    p.add(att_pro(p), sched=True)
    p.add([I("LG 0", "wait", lgkm=0)])
    p.stamp()
    p.add(att_iter(p, 0, True, "It0"), sched=True)
    p.add([salu(f"s_mov_b32 s{sPass},3", [], S(sPass))])
    p.stamp()
    p.label("LI")
    p.add([I("LG 0", "wait", lgkm=0)])
    p.add(att_iter(p, 1, False, "ItO"), sched=True)
    p.add([I("LG 0", "wait", lgkm=0)])
    p.add(att_iter(p, 0, False, "ItE"), sched=True)
    p.add([salu(f"s_sub_u32 s{sPass},s{sPass},1", S(sPass), S(sPass)),
           salu(f"s_cmp_lg_u32 s{sPass},0", S(sPass), ["scc"]), I(f"s_cbranch_scc1 {p.lbl('LI')}", "branch", rd=["scc"])])
    p.add([I("LG 0", "wait", lgkm=0)])
    p.stamp()
    p.add(att_last(p) + epiB_common(p), sched=True)
    p.stamp()
    for h in range(4):
        if h < 3:
            p.add([salu(f"s_cmp_eq_u32 s{sHead},{h}", S(sHead), ["scc"]), I(f"s_cbranch_scc0 {p.lbl('EB%d'%(h+1))}", "branch", rd=["scc"])])
        p.add(epiB_head(w, h) + (touch_slice(w, sWOT, h-1, 10) if h in (1, 2) else []))
        if h < 3:
            p.add([salu(f"s_add_u32 s{sHead},s{sHead},1", S(sHead), S(sHead)), I(f"s_branch {p.lbl('LB')}", "branch")])
            p.label(f"EB{h+1}")
    P = []
    P += [valu(f"v_mov_b32 v{vAX},v{vV0}", V(vV0), V(vAX)), salu(f"s_mov_b32 s{sPass},0", [], S(sPass))]
    P += barrier(vm=24, needs=lambda ctx: [("wo", 0, 0)])
    stC = epiC_stores(w, True, True)
    if "nostore" in EXPT: stC = []
    groups = {}; cur = []; ns = 0; c = 0
    for i in stC:
        cur.append(i)
        if i.kind == "vmem":
            ns += 1
            if ns % 2 == 0 or ns == 13: groups[c] = cur; cur = []; c += 1
    bodyC, b13C, _ = pass_body(p, "C", extra=groups)
    P += proj_reads("V", 0, 0, 0) + b13C(0)
    P += add64(sB, sWO, 7*64*1024)
    p.add(P)
    p.add([salu(f"s_mov_b64 s[{sMask}:{sMask+1}],0", [], S(sMask,2))])
    p.label("LC")
    p.add([I("LG 0", "wait", lgkm=0)])
    p.stamp()
    p.add(bodyC + epiC_cvt(w), sched=True)
    p.stamp()
    p.add(add64(sWO, sWO, 0 if "wosame" in EXPT else 256) +
          [salu(f"s_cmp_eq_u32 s{sPass},0\ns_cselect_b32 s{sT0},0,53248", S(sPass), S(sT0))] + add64s(sWS, sWS, sT0) +
          [salu(f"s_mov_b64 s[{sMask}:{sMask+1}],-1", [], S(sMask,2)),
           salu(f"s_add_u32 s{sPass},s{sPass},1", S(sPass), S(sPass)),
           salu(f"s_cmp_lg_u32 s{sPass},4", S(sPass), ["scc"]), I(f"s_cbranch_scc1 {p.lbl('LC')}", "branch", rd=["scc"])])
    p.add(epiC_stores(w, False, False))
    p.stamp()
    p.add([I("s_waitcnt vmcnt(0) lgkmcnt(0)", "wait", lgkm=0, vm=0)])
    p.stamp()
    if "bartime" in EXPT:
        for sr in (54, 55):
            p.add([valu("v_accvgpr_read_b32 v255,a252", A(252), V(255)), salu("s_mov_b32 m0,s62", S(62), ["m0"]), I("s_nop 1", "nop", n=2),
                   valu(f"v_writelane_b32 v255,s{sr},m0", V(255), V(255)), I("s_nop 1", "nop", n=2),
                   valu("v_accvgpr_write_b32 a252,v255", V(255), A(252)), salu("s_add_u32 s62,s62,1", S(62), S(62))])
    p.stamp_flush()
    p.add([I("s_waitcnt vmcnt(0) lgkmcnt(0)", "wait", lgkm=0, vm=0), I("s_endpgm", "end")])
    return p

HEADER = open("standalone__mha_block_cached__near_ridge.s.ref").read().split("; Override launch")[0]

def kd(name, vgpr, accum, sgpr=96):
    return f""".section .rodata,"a"
.p2align 6
.amdhsa_kernel {name}
  .amdhsa_next_free_vgpr {vgpr}
  .amdhsa_next_free_sgpr {sgpr}
  .amdhsa_accum_offset {accum}
  .amdhsa_group_segment_fixed_size 0
  .amdhsa_kernarg_size 64
  .amdhsa_user_sgpr_count 2
  .amdhsa_user_sgpr_kernarg_segment_ptr 1
  .amdhsa_system_sgpr_workgroup_id_x 1
  .amdhsa_float_denorm_mode_32 3
.end_amdhsa_kernel
"""

RED_WGS = 832
def reduce_kernel():
    n = "mha_reduce_kernel"
    L = []
    a = L.append
    a(f".text\n.globl {n}\n.p2align 8\n.type {n},@function\n{n}:")
    a(f"s_cmp_ge_u32 s2,{RED_WGS}"); a("s_cbranch_scc1 RED_END")
    a("s_load_dwordx2 s[4:5],s[0:1],56"); a("s_load_dwordx2 s[6:7],s[0:1],40")
    a("v_lshrrev_b32 v1,6,v0"); a("s_nop 0"); a("v_readfirstlane_b32 s8,v1")
    a("s_lshl_b32 s9,s2,2"); a("s_nop 2"); a("s_add_u32 s8,s8,s9")
    a(f"s_mul_hi_u32 s10,s8,{(1<<32)//104+1}")
    a("s_mul_i32 s11,s10,104"); a("s_sub_u32 s11,s8,s11")
    a(f"s_mul_hi_u32 s12,s11,{(1<<32)//26+1}")
    a("s_mul_i32 s13,s12,26"); a("s_sub_u32 s13,s11,s13")
    a("s_mul_i32 s14,s10,1703936"); a("s_mul_i32 s15,s12,53248"); a("s_add_u32 s14,s14,s15")
    a("s_lshl_b32 s15,s13,11"); a("s_add_u32 s14,s14,s15")
    a("v_and_b32 v2,63,v0"); a("v_lshlrev_b32 v3,4,v2")
    a("s_waitcnt lgkmcnt(0)")
    a("s_add_u32 s4,s4,s14"); a("s_addc_u32 s5,s5,0")
    for g in range(8):
        a(f"global_load_dwordx4 v[{8+8*g}:{11+8*g}],v3,s[4:5]")
        a(f"global_load_dwordx4 v[{12+8*g}:{15+8*g}],v3,s[4:5] offset:1024")
        if g < 7:
            a("s_add_u32 s4,s4,212992"); a("s_addc_u32 s5,s5,0")
    a("s_lshr_b32 s16,s13,1"); a("s_and_b32 s17,s13,1")
    a("s_mul_i32 s18,s10,208"); a("s_lshl_b32 s16,s16,4"); a("s_add_u32 s18,s18,s16"); a("s_lshl_b32 s18,s18,10")
    a("s_lshl_b32 s19,s12,8"); a("s_add_u32 s18,s18,s19"); a("s_lshl_b32 s19,s17,7"); a("s_add_u32 s18,s18,s19")
    a("s_add_u32 s6,s6,s18"); a("s_addc_u32 s7,s7,0")
    a("v_and_b32 v4,15,v2"); a("v_lshlrev_b32 v4,7,v4"); a("v_lshrrev_b32 v5,4,v2"); a("v_lshl_add_u32 v4,v5,4,v4")
    a("v_lshlrev_b32 v5,11,v1"); a("v_add_u32 v4,v4,v5"); a("v_add_u32 v100,v3,v5")
    a("v_lshrrev_b32 v101,3,v2"); a("v_lshlrev_b32 v101,10,v101"); a("v_and_b32 v102,7,v2"); a("v_lshl_add_u32 v101,v102,4,v101")
    a("s_mov_b32 s20,0xffff0000")
    for g in range(8):
        a(f"s_waitcnt vmcnt({14-2*g})")
        for i in range(8):
            r = 8+8*g+i
            if g == 0:
                a(f"v_lshlrev_b32 v{72+2*i},16,v{r}"); a(f"v_and_b32 v{73+2*i},s20,v{r}")
            else:
                a(f"v_lshlrev_b32 v6,16,v{r}"); a(f"v_and_b32 v7,s20,v{r}")
                a(f"v_add_f32 v{72+2*i},v{72+2*i},v6"); a(f"v_add_f32 v{73+2*i},v{73+2*i},v7")
    for i in range(8): a(f"v_cvt_pk_bf16_f32 v{88+i},v{72+2*i},v{73+2*i}")
    a("s_nop 1")
    for e in range(2):
        r = 88+4*e
        a(f"v_permlane32_swap_b32 v{r},v{r+2}"); a(f"v_permlane32_swap_b32 v{r+1},v{r+3}")
    a("s_nop 1")
    for e in range(2):
        r = 88+4*e
        a(f"v_permlane16_swap_b32 v{r},v{r+2}"); a(f"v_permlane16_swap_b32 v{r+1},v{r+3}")
    a("s_nop 1")
    a("ds_write_b128 v4,v[88:91]"); a("ds_write_b128 v4,v[92:95] offset:64"); a("s_waitcnt lgkmcnt(0)")
    a("ds_read_b128 v[88:91],v100"); a("ds_read_b128 v[92:95],v100 offset:1024"); a("s_waitcnt lgkmcnt(1)")
    a("global_store_dwordx4 v101,v[88:91],s[6:7]")
    a("s_add_u32 s6,s6,8192"); a("s_addc_u32 s7,s7,0"); a("s_waitcnt lgkmcnt(0)")
    a("global_store_dwordx4 v101,v[92:95],s[6:7]")
    a("RED_END:"); a("s_endpgm")
    return "\n".join(L) + "\n" + kd(n, 104, 104, 32)

def main():
    n = "mha_main_kernel"
    progs = [wave_program(w) for w in range(4)]
    if "noautovm" not in EXPT:
        import trace as _tr
        for p in progs: _tr.auto_vmcnt(p)
    if "cvm63" in EXPT:
        import re as _re
        for p in progs:
            seen = False
            for i in p.main:
                if i.kind == "label" and i.txt.startswith("LC_"): seen = True
                if seen and i.kind == "wait" and i.meta.get("needs"): i.txt = _re.sub(r"vmcnt\(\d+\)", "vmcnt(63)", i.txt)
    out = [HEADER.rstrip("\n")]
    out.append(f"; @launch kernel={n} grid=(256,1,1) block=(256,1,1) lds={LDS_BYTES}")
    out.append(f"; @launch kernel=mha_reduce_kernel grid=({RED_WGS},1,1) block=(256,1,1) lds=8192")
    out.append('.amdgcn_target "amdgcn-amd-amdhsa--gfx950"')
    out.append(MACROS)
    out.append(f".text\n.globl {n}\n.p2align 8\n.type {n},@function\n{n}:")
    E = ["s_cmp_ge_u32 s2,256", "s_cbranch_scc0 GO", "s_endpgm", "GO:",
         "s_load_dwordx4 s[4:7],s[0:1],0", "s_load_dwordx4 s[8:11],s[0:1],16", "s_load_dwordx2 s[12:13],s[0:1],32",
         "s_load_dwordx2 s[14:15],s[0:1],56",
         "v_lshrrev_b32 v1,6,v0", "s_nop 0", "v_readfirstlane_b32 s28,v1"]
    if ICWARM:
        E += ["s_getpc_b64 s[30:31]", "PCW:", f"s_sub_u32 s30,s30,PCW-{n}", "s_subb_u32 s31,s31,0",
              "s_lshr_b32 s29,s2,3", "s_lshl_b32 s29,s29,8", "v_add_u32 v2,s29,v0", "v_lshlrev_b32 v2,7,v2",
              f"v_min_u32 v2,CODE_END-{n}-4,v2", "global_load_dword a253,v2,s[30:31]"]
    E += ["s_waitcnt lgkmcnt(0)"]
    for w in range(1, 4):
        E += [f"s_cmp_eq_u32 s28,{w}", f"s_cbranch_scc0 NX{w}", "s_getpc_b64 s[30:31]", f"PC{w}:",
              f"s_add_u32 s30,s30,W{w}-PC{w}", "s_addc_u32 s31,s31,0", "s_setpc_b64 s[30:31]", f"NX{w}:"]
    out += E
    for w, p in enumerate(progs):
        out.append(".p2align 6"); out.append(f"W{w}:")
        out += [i.txt for i in p.main]
        out += [i.txt for i in p.ool]
    red = reduce_kernel()
    i_ = red.index(".section .rodata")
    out.append(red[:i_])
    out.append("CODE_END:")
    out.append(kd(n, 512, 256))
    out.append(red[i_:])
    txt = "\n".join(out) + "\n"
    return txt, progs

if __name__ == "__main__":
    txt, progs = main()
    dst = sys.argv[1] if len(sys.argv) > 1 else "standalone__mha_block_cached__near_ridge.s"
    open(dst, "w").write(txt)
    print("bytes", len(txt), "instrs/wave", [len(p.main)+len(p.ool) for p in progs])
```

```python
import re

def V(i, n=1): return [f"v{k}" for k in range(i, i+n)]
def A(i, n=1): return [f"a{k}" for k in range(i, i+n)]
def S(i, n=1): return [f"s{k}" for k in range(i, i+n)]
def rr(c, i, n):
    return f"{c}{i}" if n == 1 else f"{c}[{i}:{i+n-1}]"

class I:
    __slots__ = ("txt", "kind", "rd", "wr", "cost", "meta", "after_gap", "srcc", "dreg")
    def __init__(self, txt, kind, rd=(), wr=(), cost=None, **meta):
        self.txt = txt; self.kind = kind
        self.rd = list(rd); self.wr = list(wr)
        self.cost = cost if cost is not None else {"valu":4,"trans":8,"perm":4,"dsr":4,"dsw":4,"dma":4,"vmem":4,"salu":1,"mfma":8}.get(kind, 1)
        self.meta = meta
        self.srcc = meta.get("srcc", [])
        self.dreg = meta.get("dreg", None)
    def __repr__(self): return self.txt

def reg(cls, i, n): return (cls, i, n)
def regs(r): return [f"{r[0]}{k}" for k in range(r[1], r[1]+r[2])]
def rtxt(r): return rr(r[0], r[1], r[2])

def mfma(D, Aop, Bop, C):
    d = (D[0], D[1], 4); a = (Aop[0], Aop[1], 4); b = (Bop[0], Bop[1], 4)
    if C is None: c = d; ctxt = rtxt(d); crd = regs(d)
    elif C == 0: ctxt = "0"; crd = []
    else: c = (C[0], C[1], 4); ctxt = rtxt(c); crd = regs(c)
    key = (D[0], Aop[0], Bop[0])
    if D[0] == 'v' and Aop[0] == 'a':
        if C is None: txt = f"M{Bop[0]} {D[1]},{Aop[1]},{Bop[1]}"
        elif C == 0:  txt = f"Z{Bop[0]} {D[1]},{Aop[1]},{Bop[1]}"
        elif C[0] == 'v': txt = f"C{Bop[0]} {D[1]},{Aop[1]},{Bop[1]},{C[1]}"
        else: raise ValueError
    else:
        txt = f"v_mfma_f32_16x16x32_bf16 {rtxt(d)},{rtxt(a)},{rtxt(b)},{ctxt}"
    return I(txt, "mfma", rd=regs(a)+regs(b)+crd, wr=regs(d), srcc=crd, dreg=(d, C is None), ab=regs(a)+regs(b))

MACROS = r"""
.macro Ma d,a,b
v_mfma_f32_16x16x32_bf16 v[\d:\d+3],a[\a:\a+3],a[\b:\b+3],v[\d:\d+3]
.endm
.macro Mv d,a,b
v_mfma_f32_16x16x32_bf16 v[\d:\d+3],a[\a:\a+3],v[\b:\b+3],v[\d:\d+3]
.endm
.macro Za d,a,b
v_mfma_f32_16x16x32_bf16 v[\d:\d+3],a[\a:\a+3],a[\b:\b+3],0
.endm
.macro Zv d,a,b
v_mfma_f32_16x16x32_bf16 v[\d:\d+3],a[\a:\a+3],v[\b:\b+3],0
.endm
.macro Ca d,a,b,c
v_mfma_f32_16x16x32_bf16 v[\d:\d+3],a[\a:\a+3],a[\b:\b+3],v[\c:\c+3]
.endm
.macro Cv d,a,b,c
v_mfma_f32_16x16x32_bf16 v[\d:\d+3],a[\a:\a+3],v[\b:\b+3],v[\c:\c+3]
.endm
.macro TR d,r,o
ds_read_b64_tr_b16 a[\d:\d+1],v\r offset:\o
.endm
.macro RD d,r,o
ds_read_b128 a[\d:\d+3],v\r offset:\o
.endm
.macro EX d
v_exp_f32 v\d,v\d
.endm
.macro CV d,a,b
v_cvt_pk_bf16_f32 v\d,v\a,v\b
.endm
.macro DM p,s,o
global_load_lds_dwordx4 v\p,s[\s:\s+1] offset:\o nt
.endm
.macro AW d,s
v_accvgpr_write_b32 a\d,v\s
.endm
.macro AM d,s
v_accvgpr_mov_b32 a\d,a\s
.endm
.macro MU d,s
v_mul_f32 v\d,\s,v\d
.endm
.macro LG n
s_waitcnt lgkmcnt(\n)
.endm
"""

def ds_tr(da, vaddr, off, fence="LDSF"):
    assert 0 <= off < 65536, off
    return I(f"TR {da},{vaddr},{off}", "dsr", rd=[f"v{vaddr}", fence, "DSORD"], wr=A(da,2)+["DSORD"])
def ds_r128(da, vaddr, off, fence="LDSF"):
    assert 0 <= off < 65536, off
    return I(f"RD {da},{vaddr},{off}", "dsr", rd=[f"v{vaddr}", fence, "DSORD"], wr=A(da,4)+["DSORD"])
def ds_r128v(dv, vaddr, off, fence="LDSF"):
    assert 0 <= off < 65536, off
    return I(f"ds_read_b128 v[{dv}:{dv+3}],v{vaddr} offset:{off}", "dsr", rd=[f"v{vaddr}", fence, "DSORD"], wr=V(dv,4)+["DSORD"])
def ds_w128(vaddr, sv, off, fence="LDSF"):
    assert 0 <= off < 65536, off
    return I(f"ds_write_b128 v{vaddr},v[{sv}:{sv+3}] offset:{off}", "dsw", rd=[f"v{vaddr}", fence, "DSORD"]+V(sv,4), wr=["DSORD"])
def ds_w64(vaddr, sv, off, fence="LDSF"):
    assert 0 <= off < 65536, off
    return I(f"ds_write_b64 v{vaddr},v[{sv}:{sv+1}] offset:{off}", "dsw", rd=[f"v{vaddr}", fence, "DSORD"]+V(sv,2), wr=["DSORD"])
def dma(vpat, sbase, off, item=None):
    return I(f"DM {vpat},{sbase},{off}", "dma", rd=[f"v{vpat}", "m0", "LDSF", "VMORD"]+S(sbase,2), wr=["VMORD"], item=item, dl_rel=14)
def dma_next(vpat, sbase, off, m0next, item=None):
    i = dma(vpat, sbase, off, item)
    if m0next:
        i.txt += "\n" + m0next; i.wr = i.wr + ["m0"]; i.meta["fused_m0"] = True
    return i
def vexp(d): return I(f"EX {d}", "trans", rd=V(d), wr=V(d))
def vcvt(d, a, b): return I(f"CV {d},{a},{b}", "valu", rd=V(a)+V(b), wr=V(d))
def valu(txt, rd, wr, kind="valu"): return I(txt, kind, rd=rd, wr=wr)
def salu(txt, rd, wr): return I(txt, "salu", rd=rd, wr=wr)
def accw(da, sv): return I(f"AW {da},{sv}", "valu", rd=V(sv), wr=A(da))
def accm(da, sa): return I(f"AM {da},{sa}", "valu", rd=A(sa), wr=A(da))
def vmul_s(d, s): return I(f"MU {d},{s}", "valu", rd=V(d)+([s] if s.startswith('s') or s.startswith('v') else []), wr=V(d))
def perm32(a, b): return I(f"v_permlane32_swap_b32 v{a},v{b}", "perm", rd=V(a)+V(b), wr=V(a)+V(b))
def perm16(a, b): return I(f"v_permlane16_swap_b32 v{a},v{b}", "perm", rd=V(a)+V(b), wr=V(a)+V(b))
def barrier(vm=None, needs=None):
    w = "s_waitcnt " + (f"vmcnt({vm}) " if vm is not None else "") + "lgkmcnt(0)"
    return [I(w, "wait", rd=[], wr=["LDSF", "DSORD"], anchor=True, vm=vm, lgkm=0, needs=needs),
            I("s_barrier", "bar", rd=[], wr=["LDSF"], anchor=True)]
def raw(txt, kind="salu", rd=(), wr=(), **meta): return I(txt, kind, rd=rd, wr=wr, **meta)

def is_anchor(ins): return ins.kind == "mfma" or ins.meta.get("anchor", False)

import os
MAXDS = int(os.environ.get('MAXDS', '1'))
WINDOW = int(os.environ.get('WINDOW', '12'))
LATDS = int(os.environ.get('LATDS', '7'))
def schedule(region, gapbudget=8, lat_ds=LATDS, mfma_to_valu=4, maxsalu=2, window=WINDOW):
    n = len(region)
    preds = [set() for _ in range(n)]; succs = [set() for _ in range(n)]
    rawm = [set() for _ in range(n)]
    last_w = {}; readers = {}
    for i, ins in enumerate(region):
        for r in ins.rd:
            if r in last_w:
                preds[i].add(last_w[r])
                if region[last_w[r]].kind == "mfma" and ins.kind != "mfma": rawm[i].add(last_w[r])
        for r in ins.wr:
            if r in last_w:
                preds[i].add(last_w[r])
                if region[last_w[r]].kind == "mfma" and ins.kind != "mfma": rawm[i].add(last_w[r])
            for j in readers.get(r, ()):
                if j != i: preds[i].add(j)
        for r in ins.rd: readers.setdefault(r, []).append(i)
        for r in ins.wr: last_w[r] = i; readers[r] = []
    for i in range(n):
        preds[i].discard(i)
        for p in preds[i]: succs[p].add(i)
    anchors = [i for i in range(n) if is_anchor(region[i])]
    apos = {}; k = 0
    for i in anchors:
        apos[i] = k
        if region[i].kind == "mfma": k += 1
    nm = k
    ppos = [0]*n; k = 0
    for i in range(n):
        ppos[i] = k
        if region[i].kind == "mfma": k += 1
    dl = [None]*n
    for i in range(n-1, -1, -1):
        if i in apos: dl[i] = apos[i]; continue
        d = nm + 1000
        for s in succs[i]:
            ki, ks = region[i].kind, region[s].kind
            lat = 0
            if ki == "dsr" and any(r in region[s].rd for r in region[i].wr if r != "DSORD"): lat = lat_ds
            elif ki in ("dsr", "dsw") and ks in ("wait", "branch") and "LDSF" in region[s].wr: lat = lat_ds
            elif ki in ("trans","valu","perm") and ks == "mfma": lat = 1
            elif ki == "trans": lat = 1
            elif ki in ("valu","perm") and ks == "perm": lat = 1
            d = min(d, dl[s] - lat)
        if region[i].meta.get("need_end"): d = min(d, nm - lat_ds)
        if region[i].meta.get("dl_rel") is not None: d = min(d, ppos[i] + region[i].meta["dl_rel"])
        dl[i] = d + region[i].meta.get("dl_bias", 0)
    emitted = [False]*n; out = []; gap_of = [None]*n
    npend = [len(preds[i]) for i in range(n)]
    ready = set(i for i in range(n) if npend[i] == 0 and i not in apos)
    cur_gap = [0]
    def emit(i):
        emitted[i] = True; gap_of[i] = cur_gap[0]; out.append(region[i])
        ready.discard(i)
        for s in succs[i]:
            npend[s] -= 1
            if npend[s] == 0 and s not in apos: ready.add(s)
    def force(i):
        stack = sorted(p for p in preds[i] if not emitted[p])
        for p in stack:
            if emitted[p]: continue
            assert p not in apos, f"anchor pred not emitted: {region[p]} before {region[i]}"
            force(p); emit(p)
    def earliest_ok(i):
        for p in rawm[i]:
            if cur_gap[0] < apos[p] + mfma_to_valu: return False
        if region[i].kind == "dsr" and cur_gap[0] < dl[i] - window: return False
        if region[i].kind == "dma":
            for p in preds[i]:
                if "m0" in region[p].wr and gap_of[p] == cur_gap[0] and region[p].kind == "salu": return False
        mg = region[i].meta.get("min_gap")
        if mg is not None and cur_gap[0] < mg: return False
        mr = region[i].meta.get("min_rel")
        if mr is not None and cur_gap[0] < ppos[i] + mr: return False
        return True
    for a in anchors:
        force(a); emit(a)
        if region[a].kind != "mfma": continue
        cur_gap[0] = apos[a] + 1
        budget = gapbudget; nsalu = 0; nvm = 0; had_trans = False; lastk = None; nds = 0
        while True:
            cands = [i for i in ready if earliest_ok(i)]
            cands.sort(key=lambda i: (dl[i] if dl[i] < nm + 500 else nm + 500, i))
            pick = None
            if lastk is not None:
                isv = lambda k: k in ("valu", "perm")
                pref = [i for i in cands if region[i].kind not in ("salu", "trans") and isv(region[i].kind) != isv(lastk)]
                urgent = [i for i in cands if dl[i] <= cur_gap[0] + 1 and region[i].kind != "salu"]
                if pref and not urgent: cands = pref + [i for i in cands if i not in pref]
            for i in cands:
                ins = region[i]
                if ins.kind == "salu":
                    if nsalu < maxsalu: pick = i; break
                    continue
                if ins.kind in ("dma", "vmem") and nvm >= 1: continue
                if ins.kind in ("dsr", "dsw") and nds >= MAXDS and dl[i] > cur_gap[0] - 2: continue
                if had_trans: continue
                if ins.cost <= budget: pick = i; break
            if pick is None: break
            ins = region[pick]
            if ins.kind == "salu": nsalu += 1
            else:
                budget -= ins.cost
                if ins.kind == "trans": had_trans = True
                if ins.kind in ("dma", "vmem"): nvm += 1
                if ins.kind in ("dsr", "dsw"): nds += 1
                lastk = ins.kind
            emit(pick)
    for i in range(n):
        if not emitted[i]:
            force(i); emit(i)
    return out

def insert_lgkm(seq, pend=None):
    out = []; pend = [] if pend is None else pend
    for ins in seq:
        if ins.kind == "wait" and ins.meta.get("lgkm") is not None:
            k = ins.meta["lgkm"]; pend = pend[len(pend)-k:] if k else []
            out.append(ins); continue
        touch = set(r for r in ins.rd + ins.wr if r[0] in "va" and r[1:].isdigit())
        need = -1
        for j, d in enumerate(pend):
            if d & touch: need = j
        if need >= 0:
            nleft = len(pend) - need - 1
            out.append(I(f"LG {nleft}", "wait", lgkm=nleft, auto=True))
            pend = pend[need+1:]
        if ins.kind in ("dsr", "dsw") and len(pend) >= 15:
            out.append(I("LG 14", "wait", lgkm=14, auto=True)); pend = pend[-14:]
        if ins.kind == "dsr":
            pend.append(set(r for r in ins.wr if r != "DSORD"))
        elif ins.kind == "dsw":
            pend.append(set())
        assert len(pend) <= 15, "lgkmcnt overflow"
        out.append(ins)
    return out, pend

def is_valu(k): return k in ("valu", "trans", "perm")
def need_states(P, C):
    pw = set(P.wr); pr = set(P.rd); cr = set(C.rd); cw = set(C.wr)
    reg = lambda s: set(r for r in s if r[0] in "va" and r[1:].isdigit())
    n = 0
    if is_valu(P.kind):
        if C.kind == "mfma" and reg(pw) & reg(cr): n = max(n, 2)
        if C.kind == "perm" and reg(pw) & reg(cr): n = max(n, 2)
        if P.kind == "trans" and C.kind in ("valu", "perm") and reg(pw) & reg(cr): n = max(n, 1)
        sw = set(r for r in pw if (r[0] == "s" and r[1:].isdigit()) or r == "vcc")
        if sw:
            if is_valu(C.kind) and sw & cr: n = max(n, 2)
            if C.kind in ("dma", "vmem") and sw & cr: n = max(n, 5)
            if C.kind in ("salu", "branch") and sw & cr: n = max(n, 1)
        if C.meta.get("readlane") and reg(pw) & reg(cr): n = max(n, 1)
    if P.kind == "mfma":
        D = reg(pw)
        if C.kind == "mfma":
            if D & set(C.meta["ab"]): n = max(n, 8)
            if D & set(C.srcc):
                same = C.dreg[1] and C.dreg[0] == P.dreg[0]
                if not same: n = max(n, 6)
            elif D & reg(cw):
                n = max(n, 6)
        elif is_valu(C.kind) or C.kind in ("dsr", "dsw", "vmem", "dma"):
            if D & (reg(cr) | reg(cw)): n = max(n, 8)
        if is_valu(C.kind) and set(P.srcc) & reg(cw): n = max(n, 3)
    if "m0" in pw and C.kind == "dma": n = max(n, 1)
    if P.kind == "vmem" and P.meta.get("store") and is_valu(C.kind) and reg(pr) & reg(cw): n = max(n, 2)
    return n
def states_of(ins):
    if ins.kind == "nop": return ins.meta["n"]
    if ins.kind == "label": return 0
    return 1 + ins.txt.count("\n") if not ins.meta.get("fused_m0") else 1
def fix_hazards(seq, hist=None, check_only=False):
    hist = [] if hist is None else list(hist)
    out = []; viol = []
    for ins in seq:
        if ins.kind != "label":
            dist = 0; need = 0
            for P in reversed(hist):
                r = need_states(P, ins)
                if r - dist > need: need = r - dist; culprit = P
                dist += states_of(P)
                if dist >= 10: break
            if need > 0:
                if check_only: viol.append((culprit, ins, need))
                else:
                    nop = I(f"s_nop {need-1}", "nop", n=need)
                    out.append(nop); hist.append(nop)
        out.append(ins); hist.append(ins)
        if len(hist) > 24: hist = hist[-24:]
    return out, hist, viol
```

```python
import sys, math, struct
sys.path.insert(0, "gen")
from asmlib import *

SL = 16896
PC = 1056
R1 = 8*SL
OFF_Q13 = [16384, 16384+4096, 16384+8192, 0]
OFF_P13 = 4096
LDS_BYTES = 163840
NAME = "standalone__mha_block_cached__near_ridge"

sX, sK0, sV0, sWQ, sWO, sWS, sB, sVB = 4, 6, 8, 10, 12, 14, 16, 18
sPass, sCnt, sKa, sKb, sVa, sVb, sScale, sThr = 20, 21, 22, 23, 24, 25, 26, 27
sT0, sT1, sT2, sT3 = 28, 29, 30, 31
sST = 32
sHead = 34
sDbg = 36
ACC = 0
def acc(dt, qt): return ACC + 12*dt + 4*qt
def acc13(e): return ACC + 96 + 4*e
QT = 104
LACC = 104
SREG = 120
PREG = 152
CREG = 200
vPatV = 216
vK0, vV0 = 220, 221
vT = 224
vAX, vAL, vPat, vAK, vTmp = 248, 249, 250, 254, 255
def T(k, s, qt): return 48*k + 12*s + 4*qt
def XF(s, qt): return 12*s + 4*qt
POOL = 192
def pool(sg, i): return POOL + 16*sg + 4*i
B13 = 224
ONES = 240
P13 = 244

import os
EXPT = os.environ.get("EXPT", "").split(",")
PROFILE = bool(os.environ.get("PROFILE"))
ICWARM = int(os.environ.get("ICWARM", "1"))
SCALE = math.log2(math.e) / math.sqrt(128.0)
def f2u(x): return struct.unpack("<I", struct.pack("<f", x))[0]

class Prog:
    def __init__(self, w):
        self.w = w; self.main = []; self.ool = []; self.hist = []; self.pend = []
    def lbl(self, name): return f"{name}_w{self.w}"
    def stamp(self):
        if not PROFILE: return
        self.add([I("s_memtime s[60:61]\ns_memrealtime s[70:71]", "salu", wr=S(60,2)+S(70,2)), I("s_waitcnt lgkmcnt(0)", "wait", lgkm=0),
                  valu("v_accvgpr_read_b32 v255,a252", A(252), V(255)), salu("s_mov_b32 m0,s62", S(62), ["m0"]), I("s_nop 1", "nop", n=2),
                  valu("v_writelane_b32 v255,s60,m0", V(255)+S(60), V(255)), I("s_nop 1", "nop", n=2),
                  valu("v_accvgpr_write_b32 a252,v255", V(255), A(252)),
                  valu("v_accvgpr_read_b32 v255,a254", A(254), V(255)), I("s_nop 1", "nop", n=2),
                  valu("v_writelane_b32 v255,s70,m0", V(255)+S(70), V(255)), I("s_nop 1", "nop", n=2),
                  valu("v_accvgpr_write_b32 a254,v255", V(255), A(254)),
                  salu("s_add_u32 s62,s62,1", S(62), S(62))])
    def stamp_flush(self):
        if not PROFILE: return
        w = self.w
        self.add([salu("s_lshl_b32 s60,s2,10", ["s2"], S(60)), salu(f"s_add_u32 s60,s60,{(64<<20) + w*256}", S(60), S(60)),
                  salu("s_load_dwordx2 s[62:63],s[0:1],56", [], S(62,2)), I("s_waitcnt lgkmcnt(0)", "wait", lgkm=0),
                  salu("s_add_u32 s62,s62,s60", S(62)+S(60), S(62)), salu("s_addc_u32 s63,s63,0", S(63), S(63)),
                  valu("v_accvgpr_read_b32 v255,a252", A(252), V(255)),
                  valu(f"v_subrev_u32 v254,{R1},v{vAL}", V(vAL), V(254)), valu("v_lshrrev_b32 v254,2,v254", V(254), V(254)),
                  I("global_store_dword v254,v255,s[62:63]", "vmem", rd=V(254)+V(255)+S(62,2), item=lambda ctx: ("st",)),
                  I("s_nop 1", "nop", n=2),
                  valu("v_accvgpr_read_b32 v253,a254", A(254), V(253)),
                  salu("s_add_u32 s62,s62,0x100000\ns_addc_u32 s63,s63,0", S(62,2), S(62,2)),
                  I("global_store_dword v254,v253,s[62:63]", "vmem", rd=V(254)+V(253)+S(62,2), item=lambda ctx: ("st",))])
    def add(self, seq, sched=False, **kw):
        if sched: seq = schedule(seq, **kw)
        seq, self.pend = insert_lgkm(seq, self.pend)
        seq, self.hist, _ = fix_hazards(seq, self.hist)
        self.main += seq
    def label(self, name):
        self.main.append(I(f"{self.lbl(name)}:", "label"))
    def add_ool(self, name, seq, back):
        s = [I(f"{self.lbl(name)}:", "label")] + [I("s_nop 1", "nop", n=2)] + list(seq)
        s, _, _ = fix_hazards(s, [])
        s += [I("s_nop 1", "nop", n=2), I(f"s_branch {self.lbl(back)}", "branch")]
        self.ool += s

def alt_anchor(p, name, cmp_txt, rd, wr, seq, skip=()):
    back = name + "_r"
    p.add_ool(name, seq, back)
    g = [I(cmp_txt + f"\ns_cbranch_scc1 {p.lbl(name)}", "branch", rd=list(rd), wr=list(wr), anchor=True)]
    g += list(skip)
    g += [I(f"{p.lbl(back)}:", "label", anchor=True, wr=list(wr))]
    return g

def lane_consts(w):
    L = []
    L.append(valu("v_and_b32 v255,63,v0", V(0), V(255)))
    L.append(valu(f"v_lshlrev_b32 v{vAL},4,v255", V(255), V(vAL)))
    L.append(valu(f"v_add_u32 v{vAL},{R1},v{vAL}", V(vAL), V(vAL)))
    return L
def lane_from_AL(dst):
    return [valu(f"v_subrev_u32 v{dst},{R1},v{vAL}", V(vAL), V(dst)),
            valu(f"v_lshrrev_b32 v{dst},4,v{dst}", V(dst), V(dst))]
def calc_aW(dst, lane, t0, t1):
    return [valu(f"v_bfe_u32 v{t0},v{lane},2,3", V(lane), V(t0)),
            valu(f"v_mul_u32_u24 v{dst},{PC},v{t0}", V(t0), V(dst)),
            valu(f"v_lshrrev_b32 v{t0},5,v{lane}", V(lane), V(t0)),
            valu(f"v_lshlrev_b32 v{t0},8,v{t0}", V(t0), V(t0)),
            valu(f"v_and_b32 v{t1},3,v{lane}", V(lane), V(t1)),
            valu(f"v_lshlrev_b32 v{t1},3,v{t1}", V(t1), V(t1)),
            valu(f"v_add3_u32 v{dst},v{dst},v{t0},v{t1}", V(dst)+V(t0)+V(t1), V(dst))]
def calc_aV(dst, lane, t0, t1):
    return [valu(f"v_lshrrev_b32 v{t0},2,v{lane}", V(lane), V(t0)),
            valu(f"v_mul_u32_u24 v{dst},{PC},v{t0}", V(t0), V(dst)),
            valu(f"v_and_b32 v{t1},3,v{lane}", V(lane), V(t1)),
            valu(f"v_lshl_add_u32 v{dst},v{t1},3,v{dst}", V(t1)+V(dst), V(dst))]
def calc_aK(dst, lane, t0, t1):
    return [valu(f"v_and_b32 v{t0},15,v{lane}", V(lane), V(t0)),
            valu(f"v_mul_u32_u24 v{dst},{PC},v{t0}", V(t0), V(dst)),
            valu(f"v_lshrrev_b32 v{t1},4,v{lane}", V(lane), V(t1)),
            valu(f"v_lshl_add_u32 v{dst},v{t1},4,v{dst}", V(t1)+V(dst), V(dst))]
def calc_pat(dst4, lane, t0, t1, tshift, jstep):
    L = [valu(f"v_lshrrev_b32 v{t0},4,v{lane}", V(lane), V(t0)),
         valu(f"v_lshlrev_b32 v{t0},{tshift},v{t0}", V(t0), V(t0)),
         valu(f"v_and_b32 v{t1},15,v{lane}", V(lane), V(t1)),
         valu(f"v_lshl_add_u32 v{dst4},v{t1},4,v{t0}", V(t0)+V(t1), V(dst4))]
    for j in range(1, 4):
        L.append(valu(f"v_add_u32 v{dst4+j},{j*jstep},v{dst4}", V(dst4), V(dst4+j)))
    return L
PAT_WQ = (17, 8192-256); PAT_KV = (12, 0); PAT_WO = (14, 1024-256)

def add64(dst, src, lit):
    return [salu(f"s_add_u32 s{dst},s{src},{lit}\ns_addc_u32 s{dst+1},s{src+1},0", S(src,2), S(dst,2))]
def add64s(dst, src, sreg):
    return [salu(f"s_add_u32 s{dst},s{src},s{sreg}\ns_addc_u32 s{dst+1},s{src+1},0", S(src,2)+S(sreg), S(dst,2))]

def spread(L, w, start, step):
    k = 0
    for i in L:
        if i.kind == "dma":
            i.meta["min_rel"] = start + w*(step//4) + k*step; i.meta["dl_rel"] = i.meta["min_rel"] + 4; k += 1
    return L
def dma_item_static(w, slot, vpat, sbase, item=None):
    m0 = lambda j: slot*SL + (4*w + j)*PC - 256*j
    L = [salu(f"s_mov_b32 m0,{m0(0)}", [], ["m0"])]
    for j in range(4):
        L.append(dma_next(vpat+j, sbase, 256*j, f"s_mov_b32 m0,{m0(j+1)}" if j < 3 else None, item=item))
    return L
def dma_item_dyn(w, sslot, vpat0, npat, sbase, item=None):
    L = [salu(f"s_add_u32 m0,s{sslot},{4*w*PC}", S(sslot), ["m0"])]
    for j in range(4):
        L.append(dma_next(vpat0 + (j if npat == 4 else 0), sbase, 256*j, f"s_add_u32 m0,m0,{PC-256}" if j < 3 else None, item=item))
    return L

def proj_reads(kind, slot, blk, sg):
    L = []
    base = (slot & 3)*SL
    for dtl in range(2):
        dt = 2*blk + dtl
        for p in range(2):
            for e in range(2):
                if kind == "W": off = base + e*8*PC + p*512 + dt*32
                else:           off = base + (2*p+e)*256 + dt*32
                L.append(ds_tr(pool(sg, 2*dtl+p) + 2*e, vAX, off))
    return L
def proj_mfmas(w, blk, sg, first, Bf, B13f):
    L = []
    for dtl in range(2):
        dt = 2*blk + dtl
        for qt in range(3):
            for p in range(2):
                L.append(mfma(('v', acc(dt, qt)), ('a', pool(sg, 2*dtl+p)), ('a', Bf(qt, p)), 0 if (first and p == 0) else None))
        if blk == w:
            for p in range(2):
                L.append(mfma(('v', acc13(dtl)), ('a', pool(sg, 2*dtl+p)), ('a', B13f(p)), 0 if (first and p == 0) else None))
    return L

PREFETCH = int(os.environ.get("PF", "1"))
sPF = 38
STG = 104
def xload_ops(w, c):
    L = []
    if "nox" in EXPT:
        return [I("s_nop 0", "salu", item=None)] if False else []
    for qt in range(3):
        for pp in range(2):
            s = 2*c+pp
            L.append(I(f"global_load_dwordx4 a[{XF(s,qt)}:{XF(s,qt)+3}],v254,s[{XB[qt]}:{XB[qt]+1}] offset:{s*64} nt", "vmem",
                       rd=V(254)+S(XB[qt],2)+["VMORD"], wr=A(XF(s,qt),4)+["VMORD"], item=lambda ctx, c=c: ("x", c), dl_rel=16))
    return L
XB = [40, 42, 44, 46]
def l2_prefetch_kv(p, w, c):
    if PREFETCH != 3 or c not in (2, 3, 4, 5): return []
    src, idx = [(sV0, 3), (sK0, 4), (sV0, 4), (sK0, 5)][c-2]
    altL = add64(sPF, src, idx*16384 + 4096*w - 1024*w)
    altL += [valu(f"v_subrev_u32 v255,{R1},v{vAL}", V(vAL), V(255))]
    for j in range(4):
        altL.append(I(f"global_load_dwordx4 a[252:255],v255,s[{sPF}:{sPF+1}] offset:{1024*j} nt", "vmem", rd=V(255)+S(sPF,2), wr=A(252,4),
                      item=lambda ctx: ("pf",)))
    return alt_anchor(p, f"Apf{c}", f"s_cmp_eq_u32 s{sPass},3", S(sPass), S(sPF,2)+V(255)+["VMORD"], altL)
def tlb_touch(w):
    if PREFETCH != 2: return []
    base, size = [(sK0, 524288 - 4096), (sV0, 524288 - 4096), (sWO, 524288 - 16384), (sWS, 212992 - 4)][w]
    L = [valu(f"v_subrev_u32 v255,{R1},v{vAL}", V(vAL), V(255)), valu("v_and_b32 v255,16,v255", V(255), V(255)),
         valu("v_lshrrev_b32 v255,4,v255", V(255), V(255)), valu(f"v_mul_u32_u24 v255,{size},v255", V(255), V(255))]
    if w == 3: L.append(valu(f"v_add_u32 v255,{R1},v255", V(255), V(255)))
    L.append(I(f"global_load_dword a253,v255,s[{base}:{base+1}]", "vmem", rd=V(255)+S(base,2)+["VMORD"], wr=A(253)+["VMORD"],
               item=lambda ctx: ("pf",), dl_rel=30))
    return L
def prefetch_ops(w, isV):
    if PREFETCH != 1: return []
    src = sV0 if isV else sK0
    L = [salu(f"s_lshl_b32 s{sT2},s{sPass},17", S(sPass), S(sT2))]
    L += add64s(sPF, src, sT2)
    L += add64(sPF, sPF, 31744*w)
    L += [valu(f"v_subrev_u32 v255,{R1},v{vAL}", V(vAL), V(255)), valu("v_lshlrev_b32 v255,5,v255", V(255), V(255))]
    L.append(I(f"global_load_dword a253,v255,s[{sPF}:{sPF+1}]", "vmem", rd=V(255)+S(sPF,2)+["VMORD"], wr=A(253)+["VMORD"],
               item=lambda ctx: ("pf",), dl_rel=30))
    return L
TOUCH = int(os.environ.get("TOUCH", "0"))
sWQT, sWOT, sTB = 64, 66, 68
def touch_slice(w, sbase, head, rowshift, tmp=255):
    if not TOUCH: return []
    L = []
    if head is None:
        L.append(salu(f"s_add_u32 s{sT1},s{sPass},2\ns_and_b32 s{sT1},s{sT1},3\ns_lshl_b32 s{sT1},s{sT1},8", S(sPass), S(sT1)))
        L += add64s(sTB, sbase, sT1)
    else:
        L += add64(sTB, sbase, 256*head)
    L += [valu(f"v_add_u32 v{tmp},{(1024*(w & 1) - R1) & 0xffffffff},v{vAL}", V(vAL), V(tmp)),
          valu(f"v_lshlrev_b32 v{tmp},{rowshift-4},v{tmp}", V(tmp), V(tmp)),
          I(f"global_load_dword a253,v{tmp},s[{sTB}:{sTB+1}] offset:{128*(w >> 1)}", "vmem", rd=V(tmp)+S(sTB,2)+["VMORD"],
            wr=A(253)+["VMORD"], item=lambda ctx: ("touch",), dl_rel=24)]
    return L
def stage(qt, u): return STG + 16*qt + 4*u
sMask = 36
def epiC_cvt(w):
    L = []
    for u in range(4):
        for qt in range(3):
            L += pack_pair(stage(qt, u), acc(2*u, qt), acc(2*u+1, qt))
    L += pack_pair(STG+48, acc13(0), acc13(1))
    return L
def epiC_stores(w, masked, spread):
    L = []; k = 0
    def st(reg, off):
        nonlocal k
        pol = " nt" if "stnt" in EXPT else (" sc1" if "stsc1" in EXPT else (" sc0 sc1" if "stsc01" in EXPT else ""))
        t = f"global_store_dwordx4 v{vAL},v[{reg}:{reg+3}],s[{sST}:{sST+1}] offset:{off}{pol}"
        if masked and "nomask" not in EXPT: t = f"s_mov_b64 exec,s[{sMask}:{sMask+1}]\n{t}\ns_mov_b64 exec,-1"
        meta = dict(store=True, item=(lambda ctx: None if ctx["pass"] == 0 else ("st",)) if (masked and "nomask" not in EXPT) else (lambda ctx: ("st",)))
        if spread: meta.update(min_rel=8 + 22*(k & 1), dl_rel=12 + 22*(k & 1))
        k += 1
        return I(t, "vmem", rd=V(vAL)+V(reg,4)+S(sST,2)+S(sMask,2)+["VMORD"], wr=["VMORD"], **meta)
    for qt in range(3):
        L += add64(sST, sWS, (3*w+qt)*4096)
        for u in range(4): L.append(st(stage(qt, u), u*1024))
    L += add64(sST, sWS, 12*4096)
    L.append(st(STG+48, w*1024))
    return L

def pass_body(p, phase, pass0=False, extra=None):
    w = p.w
    kind = "W" if phase == "A" else "V"
    R = []
    def Bf(c):
        if phase == "A": return lambda qt, pp: XF(2*c+pp, qt)
        hh = c >> 1
        return lambda qt, pp: T((hh+1) & 3, 2*(c & 1)+pp, qt)
    def b13_reads(c):
        L = []
        for pp in range(2):
            if phase == "A": L.append(ds_r128(B13 + 8*(c & 1) + 4*pp, vX13, 1024*(2*c+pp)))
            else: L.append(ds_r128(B13 + 8*(c & 1) + 4*pp, vAL, OFF_Q13[c >> 1] + 1024*(2*(c & 1)+pp)))
        return L
    B13f = lambda c: (lambda pp: B13 + 8*(c & 1) + 4*pp)
    def dma_for(c):
        ch = c - 1
        L = []
        if phase == "A" and pass0:
            if c+2 <= 6:
                L += add64(sB, sWQ, (c+2)*64*8192) + dma_item_static(w, c+2, vPat, sB, item=lambda ctx, c=c: ("wq", 0, c+2))
            if c+2 <= 7: L += xload_ops(w, c+2)
            L += add64(sB, sWQ, 256 + ch*64*8192)
            item = lambda ctx, ch=ch: ("wq", 1, ch)
            if c == 8: return L
        elif phase == "A":
            altL = []
            if c == 1:
                altL += [valu(f"v_subrev_u32 v255,{R1},v{vAL}", V(vAL), V(255)),
                         valu(f"v_and_b32 v{vPat},0xf0,v255", V(255), V(vPat)),
                         valu(f"v_lshrrev_b32 v255,8,v255", V(255), V(255)),
                         valu(f"v_lshl_add_u32 v{vPat},v255,12,v{vPat}", V(255)+V(vPat), V(vPat))]
                altL += [valu(f"v_mov_b32 v{vPat+j},v{vPat}", V(vPat), V(vPat+j)) for j in range(1, 4)]
            if c <= 7:
                kv = ["K0","K1","V0","K2","V1","K3","V2"][ch]
                src = sK0 if kv[0] == "K" else sV0
                altL += add64(sB, src, int(kv[1])*16384)
            else:
                altL += add64(sB, sK0, 0)
            norm = add64(sB, sWQ, 256 + ch*64*8192)
            L += alt_anchor(p, f"Aalt{c}", f"s_cmp_eq_u32 s{sPass},3", S(sPass), S(sB,2)+V(vPat,4)+V(255), altL,
                            skip=[I(x.txt, "salu", rd=x.rd, wr=x.wr, anchor=True) for x in norm])
            item = lambda ctx, ch=ch: ("wq", ctx["pass"]+1, ch) if ctx["pass"] < 3 else [("K",0),("K",1),("V",0),("K",2),("V",1),("K",3),("V",2),("dummy",)][ch]
        else:
            altL = []
            if c == 1:
                altL += [valu(f"v_mov_b32 v{vPat+j},0", [], V(vPat+j)) for j in range(4)]
            altL += add64(sB, sWO, 0)
            norm = add64(sB, sWO, 256 + ch*64*1024)
            L += alt_anchor(p, f"Calt{c}", f"s_cmp_eq_u32 s{sPass},3", S(sPass), S(sB,2)+V(vPat,4), altL,
                            skip=[I(x.txt, "salu", rd=x.rd, wr=x.wr, anchor=True) for x in norm])
            item = lambda ctx, ch=ch: ("wo", ctx["pass"]+1, ch) if ctx["pass"] < 3 else ("dummy",)
        D = dma_item_static(w, ch & 7, vPat, sB, item=item)
        if c == 8 and not pass0: return L
        if not pass0: D = spread(D, w, 3, 11)
        return L + D
    def tail_item():
        if phase == "A": item = lambda ctx: ("wq", ctx["pass"], 7)
        else: item = lambda ctx: ("wo", ctx["pass"], 7)
        return spread(dma_item_static(w, 7, vPat, sB, item=item), w, 2, 9)
    def bar_for(c):
        if phase == "A":
            need = lambda ctx, c=c: [("wq", ctx["pass"], c)] if c < 8 else ([("wq", ctx["pass"]+1, 0)] if ctx["pass"] < 3 else [("K",0)])
        else:
            need = lambda ctx, c=c: [("wo", ctx["pass"], c)] if c < 8 else ([("wo", ctx["pass"]+1, 0)] if ctx["pass"] < 3 else [])
        b = barrier(vm=24, needs=need)
        if pass0:
            if c <= 7:
                N0 = P0N[c]
                return barrier(vm=N0, needs=lambda ctx, c=c: [("wq", 0, c), ("x", c)])
            return b
        if False:
            N0 = 66 - 6*c
            wait_alt = [I(f"s_waitcnt vmcnt({N0}) lgkmcnt(0)", "wait", lgkm=0, vm=N0, needs=lambda ctx, c=c: [("wq", 0, c), ("x", c)])]
            g = alt_anchor(p, f"P0w{c}", f"s_cmp_eq_u32 s{sPass},0", S(sPass), ["LDSF", "DSORD"], wait_alt, skip=[b[0]])
            return g + [b[1]]
        return b
    if not pass0: R += tail_item()
    for c in range(8):
        slot = c
        if c > 0: R += proj_mfmas(w, 3, 1, c-1 == 0, Bf(c-1), B13f(c-1))
        R += proj_reads(kind, slot, 1, 1)
        R += proj_mfmas(w, 0, 0, c == 0, Bf(c), B13f(c))
        R += proj_reads(kind, slot, 2, 0)
        R += proj_mfmas(w, 1, 1, c == 0, Bf(c), B13f(c))
        R += proj_reads(kind, slot, 3, 1)
        R += proj_mfmas(w, 2, 0, c == 0, Bf(c), B13f(c))
        R += bar_for(c+1)
        nslot = (c+1) & 7
        if (c+1) & 3 == 0:
            d = 4*SL if c+1 == 4 else -4*SL
            R.append(valu(f"v_add_u32 v{vAX},{d & 0xffffffff},v{vAX}", V(vAX), V(vAX)))
        rr_ = proj_reads(kind, nslot, 0, 0)
        R += need_end(rr_) if c == 7 else rr_
        rr_ = b13_reads((c+1) & 7)
        R += need_end(rr_) if c == 7 else rr_
        R += dma_for(c+1)
        if extra and c in extra: R += extra[c]
        if phase == "A":
            if pass0 and c+1 in (6, 7): R += prefetch_ops(w, c+1 == 7)
            if not pass0 and c+1 in (1, 4): R += prefetch_ops(w, c+1 == 4)
            if not pass0: R += l2_prefetch_kv(p, w, c+1)
            if c+1 == 3: R += touch_slice(w, sWQT, 2 if pass0 else None, 13)
        else:
            if c+1 == 3: R += touch_slice(w, sWOT, None, 10)
    R += proj_mfmas(w, 3, 1, False, Bf(7), B13f(7))
    return R, b13_reads, Bf

def p0_counts():
    ops = ["x13"]*4 + ["wq0"]*4 + ["x0"]*6 + ["wq1"]*4 + ["x1"]*6
    N = {}
    def need(c):
        idx = max(i for i, o in enumerate(ops) if o in (f"wq{c}", f"x{c}"))
        return min(63, len(ops)-1-idx)
    N[0] = need(0)
    for c in range(0, 8):
        if c+2 <= 6: ops += [f"wq{c+2}"]*4
        if c+2 <= 7: ops += [f"x{c+2}"]*6
        ops += [f"wq{c+7}"]*4
        if PREFETCH and c in (6, 7): ops += ["pf"]
        if c+1 <= 7: N[c+1] = need(c+1)
    return N
P0N = p0_counts()
vX13, vXR, vXP, vX13P = 254, 104, 108, 110
def x_dma(w, c, which, slot):
    pieces = [(0,0),(0,1),(1,0),(1,1)] if which == "A" else [(2,0),(2,1)]
    dest = lambda qt, j: slot*SL + ((4*w + 2*qt + j) if which == "A" else (2*w + j))*1024
    L = [salu(f"s_mov_b32 m0,{dest(*pieces[0])}", [], ["m0"])]
    for k, (qt, j) in enumerate(pieces):
        nxt = f"s_mov_b32 m0,{dest(*pieces[k+1])}" if k+1 < len(pieces) else None
        L.append(dma_next(vXP+j, XB[qt], 0, nxt, item=lambda ctx, c=c, which=which: ("x"+which, c)))
    for qt in sorted(set(q for q, _ in pieces)): L += add64(XB[qt], XB[qt], 128)
    return L
def x_reads(w, c):
    sA, sB_ = (3*c+1) % 8, (3*c+2) % 8
    L = []
    for qt in range(3):
        tb = sA*SL + (4*w + 2*qt)*1024 if qt < 2 else sB_*SL + 2*w*1024
        hi = 1 if tb >= 4*SL else 0
        for pp in range(2):
            L.append(ds_r128(XF(2*c+pp, qt), vXR + 2*hi + pp, tb - hi*4*SL))
    return L
def p0_load(w, q):
    if q >= 24:
        ch = q - 24
        return add64(sB, sWQ, 256 + ch*64*8192) + dma_item_static(w, q % 8, vPat, sB, item=lambda ctx, ch=ch: ("wq", 1, ch))
    c, r = divmod(q, 3)
    if r == 0: return add64(sB, sWQ, c*64*8192) + dma_item_static(w, q % 8, vPat, sB, item=lambda ctx, c=c: ("wq", 0, c))
    return x_dma(w, c, "A" if r == 1 else "B", q % 8)
def pass0_body(p):
    w = p.w; R = []
    half = [0]
    def reads(c, blk, sg):
        slot = (3*c) % 8 if c < 8 else 0
        L = []
        h = slot >> 2
        if h != half[0]:
            d = 4*SL if h else -4*SL
            L.append(valu(f"v_add_u32 v{vAX},{d & 0xffffffff},v{vAX}", V(vAX), V(vAX))); half[0] = h
        return L + proj_reads("W", slot, blk, sg)
    b13 = lambda c: [ds_r128(B13 + 8*(c & 1) + 4*pp, vX13, 1024*(2*c+pp)) for pp in range(2)]
    Bf = lambda c: (lambda qt, pp: XF(2*c+pp, qt))
    B13f = lambda c: (lambda pp: B13 + 8*(c & 1) + 4*pp)
    first = reads(0, 0, 0) + x_reads(w, 0) + b13(0)
    for c in range(8):
        if c > 0: R += proj_mfmas(w, 3, 1, c-1 == 0, Bf(c-1), B13f(c-1))
        R += reads(c, 1, 1)
        R += proj_mfmas(w, 0, 0, c == 0, Bf(c), B13f(c))
        R += reads(c, 2, 0)
        R += proj_mfmas(w, 1, 1, c == 0, Bf(c), B13f(c))
        R += reads(c, 3, 1)
        R += proj_mfmas(w, 2, 0, c == 0, Bf(c), B13f(c))
        n = c + 1
        if n <= 7: need = lambda ctx, n=n: [("wq", 0, n), ("xA", n), ("xB", n)]
        else: need = lambda ctx: [("wq", 1, 0)]
        R += barrier(vm=0, needs=need)
        rr_ = reads(n, 0, 0) + (x_reads(w, n) if n <= 7 else []) + b13(n & 7)
        R += need_end(rr_) if n == 8 else rr_
        D = []
        for q in range(3*n+5, 3*n+8):
            if q <= 30: D += p0_load(w, q)
        R += spread(D, w, 2, 4)
        if n == 8: R += add64(sB, sWQ, 256 + 7*64*8192)
        if n in (6, 7): R += prefetch_ops(w, n == 7)
        if n == 3: R += touch_slice(w, sWQT, 2, 13)
        if n == 5: R += tlb_touch(w)
    R += proj_mfmas(w, 3, 1, False, Bf(7), B13f(7))
    return R, first

def swap_frag(r):
    return [perm32(r, r+2), perm32(r+1, r+3), perm16(r, r+2), perm16(r+1, r+3)]
def pack_pair(dst, a, b):
    return [vcvt(dst, a, a+1), vcvt(dst+1, a+2, a+3), vcvt(dst+2, b, b+1), vcvt(dst+3, b+2, b+3)]

def pkmul(r, src):
    c, i = src[0], int(src[1:])
    return I(f"v_pk_mul_f32 v[{r}:{r+1}],v[{r}:{r+1}],{c}[{i}:{i+1}] op_sel_hi:[1,0]", "valu", rd=V(r,2)+[src], wr=V(r,2), cost=16)
def scale4(r, src, pk):
    return [pkmul(r, src), pkmul(r+2, src)] if pk else [vmul_s(r+i, src) for i in range(4)]
def epiA_common(w):
    L = []
    ss = f"s{sScale}"
    for s in range(4):
        pk = s >= 2 and "nopk" not in EXPT
        for qt in range(3):
            a, b = acc(2*s, qt), acc(2*s+1, qt)
            L += scale4(a, ss, pk) + scale4(b, ss, pk)
            L += pack_pair(a, a, b) + swap_frag(a)
    a, b = acc13(0), acc13(1)
    pk = w >= 2 and "nopk" not in EXPT
    L += scale4(a, ss, pk) + scale4(b, ss, pk)
    L += pack_pair(a, a, b) + swap_frag(a)
    return L
def epiA_head(w, h):
    L = [ds_w128(vAL, acc13(0), OFF_Q13[h] + 1024*w)]
    for s in range(4):
        for qt in range(3):
            a = acc(2*s, qt)
            for r in range(4):
                if h < 3:
                    d = QT + 48*h + 12*s + 4*qt + r
                    L.append(valu(f"v_mov_b32 v{d},v{a+r}", V(a+r), V(d)))
                else:
                    L.append(accw(T(3, s, qt)+r, a+r))
    if h == 3:
        for hh in range(3):
            for i in range(48): L.append(accw(48*hh+i, QT+48*hh+i))
    return L

def Sreg(sset, t): return SREG + 16*sset + 4*t
def Preg(pset, qt, p): return PREG + 24*pset + 8*qt + 4*p
def Qf(qt, s): return T(0, s, qt)
def Q13f(s): return B13 + 4*s
def need_end(L):
    for i in L: i.meta["need_end"] = True
    return L
def k_reads(kt, sg):
    return [ds_r128(pool(sg, s), vAK, kt*256 + s*64) for s in range(4)]
def v_reads(pair, sg):
    L = []
    for dtl in range(2):
        dt = 2*pair + dtl
        for p in range(2):
            for e in range(2):
                L.append(ds_tr(pool(sg, 2*dtl+p) + 2*e, vAX, (2*p+e)*256 + dt*32))
    return L
def qk_block(w, kt, sg, sset, with13, cinit=True):
    L = []
    tiles = [0, 1, 2] + ([3] if with13 else [])
    for t in tiles:
        for s in range(4):
            Bop = Qf(t, s) if t < 3 else Q13f(s)
            C = None if s else (('v', CREG + 4*t) if cinit else 0)
            L.append(mfma(('v', Sreg(sset, t)), ('a', pool(sg, s)), ('a', Bop), C))
    return L
def softmax_block(w, kt, sset, pset, with13, p13par):
    L = []
    tiles = ([3] if with13 else []) + [0, 1, 2]
    for t in tiles:
        r = Sreg(sset, t)
        L += [vexp(r+i) for i in range(4)]
        if t < 3:
            d = Preg(pset, t, kt >> 1) + 2*(kt & 1)
            L += [vcvt(d, r, r+1), vcvt(d+1, r+2, r+3)]
        else:
            L += [vcvt(r, r, r+1), vcvt(r+1, r+2, r+3)]
            L.append(ds_w64(vAL, r, OFF_P13 + 2048*p13par + 1024*(kt >> 1) + 8*(kt & 1)))
    return L
def pv_block(w, pair, sg, pset, first):
    L = []
    for dtl in range(2):
        dt = 2*pair + dtl
        for qt in range(3):
            for p in range(2):
                L.append(mfma(('v', acc(dt, qt)), ('a', pool(sg, 2*dtl+p)), ('v', Preg(pset, qt, p)), 0 if (first and p == 0) else None))
        if pair == w:
            for p in range(2):
                L.append(mfma(('v', acc13(dtl)), ('a', pool(sg, 2*dtl+p)), ('a', P13+4*p), 0 if (first and p == 0) else None))
    return L
def sum_block(pset, first):
    L = []
    for t in range(4):
        for p in range(2):
            Bop = ('v', Preg(pset, t, p)) if t < 3 else ('a', P13+4*p)
            L.append(mfma(('v', LACC+4*t), ('a', ONES), Bop, 0 if (first and p == 0) else None))
    return L
def p13_reads(par):
    return [ds_r128(P13+4*p, vAL, OFF_P13 + 2048*par + 1024*p) for p in range(2)]

def att_tail_dma(p, par, name):
    w = p.w
    sKold = sKa if ((par+1) & 1) == 0 else sKb
    sKnew = sKa if (par & 1) == 0 else sKb
    sVold = sVa if par == 0 else sVb
    sVnew = sVb if par == 0 else sVa
    L = []
    L.append(valu(f"v_add_u32 v{vAK},s{sKnew},v{vK0}", S(sKnew)+V(vK0), V(vAK)))
    L.append(valu(f"v_add_u32 v{vAX},s{sVnew},v{vV0}", S(sVnew)+V(vV0), V(vAX)))
    altK = []
    altK += [valu(f"v_subrev_u32 v255,{R1},v{vAL}", V(vAL), V(255)),
             valu(f"v_and_b32 v{vPat},0xf0,v255", V(255), V(vPat)),
             valu(f"v_lshrrev_b32 v255,8,v255", V(255), V(255)),
             valu(f"v_lshl_add_u32 v{vPat},v255,14,v{vPat}", V(255)+V(vPat), V(vPat))]
    altK += [valu(f"v_add_u32 v{vPat+j},{j*PAT_WO[1]},v{vPat}", V(vPat), V(vPat+j)) for j in range(1, 4)]
    altK += [salu(f"s_mul_hi_u32 s{sT0},s{sKold},{(1<<32)//SL+1}", S(sKold), S(sT0)),
             salu(f"s_lshl_b32 s{sT0},s{sT0},16", S(sT0), S(sT0))] + add64s(sB, sWO, sT0)
    altV = []
    altV += [valu(f"v_subrev_u32 v255,{R1},v{vAL}", V(vAL), V(255)),
             valu(f"v_and_b32 v{vPatV},0xf0,v255", V(255), V(vPatV)),
             valu(f"v_lshrrev_b32 v255,8,v255", V(255), V(255)),
             valu(f"v_lshl_add_u32 v{vPatV},v255,14,v{vPatV}", V(255)+V(vPatV), V(vPatV))]
    altV += [valu(f"v_add_u32 v{vPatV+j},{j*PAT_WO[1]},v{vPatV}", V(vPatV), V(vPatV+j)) for j in range(1, 4)]
    altV += [salu(f"s_mul_hi_u32 s{sT0},s{sVold},{(1<<32)//SL+1}", S(sVold), S(sT0)),
             salu(f"s_lshl_b32 s{sT0},s{sT0},16", S(sT0), S(sT0))] + add64s(sVB, sWO, sT0)
    altV_guard = [I(f"s_cmp_ge_u32 s{sCnt},29\ns_cbranch_scc0 {p.lbl(name+'K_r')}", "branch")]
    L = alt_anchor(p, name+"K", f"s_cmp_ge_u32 s{sCnt},28", S(sCnt)+S(sKold)+S(sVold)+S(sWO,2),
                   S(sB,2)+V(vPat,4)+V(255)+S(sT0)+S(sVB,2)+V(vPatV,4), altK + altV_guard + altV) + L
    L += [salu(f"s_mov_b32 s{sKrel},s{sKold}", S(sKold), S(sKrel)), salu(f"s_mov_b32 s{sVrel},s{sVold}", S(sVold), S(sVrel))]
    kc = 3*SL if sKold == sKa else 6*SL
    vc = 8*SL if sVold == sVa else 11*SL
    L.append(salu(f"s_sub_u32 s{sKold},{kc},s{sKold}", S(sKold), S(sKold)))
    L.append(salu(f"s_sub_u32 s{sVold},{vc},s{sVold}", S(sVold), S(sVold)))
    L.append(salu(f"s_add_u32 s{sCnt},s{sCnt},1", S(sCnt), S(sCnt)))
    return L
sKrel, sVrel = 48, 49
def att_dma(p, span):
    w = p.w
    itemK = lambda ctx: ("K", ctx["nb"]+4) if ctx["nb"]+4 <= 31 else ("wo", 0, [0,1,3,5][(ctx["nb"]+4) & 3])
    itemV = lambda ctx: ("V", ctx["nb"]+3) if ctx["nb"]+3 <= 31 else ("wo", 0, [2,4,6,7][(ctx["nb"]+3) & 3])
    D = dma_item_dyn(w, sKrel, vPat, 4, sB, item=itemK) + add64(sB, sB, 16384)
    D += dma_item_dyn(w, sVrel, vPatV, 4, sVB, item=itemV) + add64(sVB, sVB, 16384)
    return spread(D, w, 2, span//8)

def att_bar():
    need = lambda ctx: [x for x in (("K", ctx["nb"]+1) if ctx["nb"]+1 <= 31 else None, ("V", ctx["nb"])) if x]
    b = barrier(vm=16, needs=need)
    b[0].meta["isattbar"] = True
    if "bartime" in EXPT:
        pre = I("s_memtime s[50:51]", "salu", anchor=True, wr=["LDSF"])
        mid = I("s_memtime s[52:53]\ns_waitcnt lgkmcnt(0)", "salu", anchor=True, wr=["LDSF"])
        post = I("s_memtime s[56:57]\ns_waitcnt lgkmcnt(0)\ns_sub_u32 s50,s52,s50\ns_add_u32 s54,s54,s50\ns_sub_u32 s56,s56,s52\ns_add_u32 s55,s55,s56", "salu", anchor=True, wr=["LDSF"])
        return [pre, b[0], mid, b[1], post]
    return b

def att_pro(p):
    w = p.w
    R = []
    R += k_reads(0, 1)
    R += qk_block(w, 0, 1, 1, True, cinit=False)
    kt0 = w & 3
    R += k_reads(kt0, 0)
    for t in range(4):
        r = Sreg(1, t); c = CREG + 4*t
        R.append(valu(f"v_max3_f32 v{c},v{r},v{r+1},v{r+2}", V(r,3), V(c)))
        R.append(valu(f"v_max_f32 v{c},v{c},v{r+3}", V(c)+V(r+3), V(c)))
        R.append(valu(f"v_mov_b32 v{c+1},v{c}", V(c), V(c+1)))
        R.append(perm16(c, c+1))
        R.append(valu(f"v_max_f32 v{c},v{c},v{c+1}", V(c,2), V(c)))
        R.append(valu(f"v_mov_b32 v{c+1},v{c}", V(c), V(c+1)))
        R.append(perm32(c, c+1))
        R.append(valu(f"v_max_f32 v{c},v{c},v{c+1}", V(c,2), V(c)))
        R.append(valu(f"v_mul_f32 v{c},-1.0,v{c}", V(c), V(c)))
        for i in range(1, 4): R.append(valu(f"v_mov_b32 v{c+i},v{c}", V(c), V(c+i)))
    for j in range(4):
        kt = (w + j) & 3
        if j < 3: R += k_reads((w+j+1) & 3, (j+1) & 1)
        R += qk_block(w, kt, j & 1, j & 1, j == 0)
        R += softmax_block(w, kt, j & 1, 0, j == 0, 0)
    R += att_bar()
    R += att_tail_dma(p, 1, "Pro")
    R += need_end(k_reads(w & 3, 0))
    return R

def expt_filter(R):
    out = []
    for i in R:
        if "noexp" in EXPT and i.kind == "trans": continue
        if "nocvt" in EXPT and i.txt.startswith("CV"): continue
        if "nodma" in EXPT and i.kind == "dma": continue
        if "nobar" in EXPT and i.kind == "bar": continue
        if "nods" in EXPT and i.kind == "dsr": continue
        if "nodsw" in EXPT and i.kind == "dsw": continue
        if "novalu" in EXPT and i.kind == "valu": continue
        if "nosalu" in EXPT and i.kind == "salu" and "m0" in i.wr: continue
        if "noalt" in EXPT and i.kind in ("branch", "label"): continue
        out.append(i)
    return out
def att_iter(p, par, first, name):
    if "Aonly" in EXPT: return att_iter_(p, par, first, name)
    return expt_filter(att_iter_(p, par, first, name))
def att_iter_(p, par, first, name):
    w = p.w
    R = []
    R += p13_reads(par)
    R += att_dma(p, 80)
    for j in range(4):
        kt = (w + j) & 3
        pair = (w + 1 + j) & 3
        R += v_reads(pair, 1)
        R += qk_block(w, kt, 0, j & 1, j == 0)
        if j < 3: R += k_reads((w+j+1) & 3, 0)
        R += softmax_block(w, kt, j & 1, par ^ 1, j == 0, par ^ 1)
        if j == 3:
            R += att_bar()
            R += att_tail_dma(p, par, name)
            R += need_end(k_reads(w & 3, 0))
        R += pv_block(w, pair, 1, par, first)
    R += sum_block(par, first)
    return R

def att_last(p):
    w = p.w; par = 1
    R = []
    R += p13_reads(par)
    R += att_dma(p, 48)
    R += v_reads((w+1) & 3, 1)
    for j in range(4):
        pair = (w + 1 + j) & 3
        sg = (j + 1) & 1
        if j < 3: R += v_reads((w+2+j) & 3, j & 1)
        R += pv_block(w, pair, sg, par, False)
    R += sum_block(par, False)
    return R

def gmfma(D, Aop, Bop, C):
    d = (D[0], D[1], 4); a_ = (Aop[0], Aop[1], 4); b_ = (Bop[0], Bop[1], 4)
    if C is None: ctxt = rtxt(d); crd = regs(d)
    elif C == 0: ctxt = "0"; crd = []
    else: ctxt = rtxt((C[0], C[1], 4)); crd = regs((C[0], C[1], 4))
    return I(f"v_mfma_f32_16x16x32_bf16 {rtxt(d)},{rtxt(a_)},{rtxt(b_)},{ctxt}", "mfma", rd=regs(a_)+regs(b_)+crd, wr=regs(d),
             srcc=crd, dreg=(d, C is None), ab=regs(a_)+regs(b_))
sSK, sSK2, sSV, sSV2, sSC = 72, 74, 76, 78, 80
def slow_path(p):
    w = p.w
    L = []
    vKa, vVa, vM, KF, SF, PF_, VF = 228, 229, 232, 152, 120, 184, 224
    Qop = lambda t, s: ('a', Qf(t, s) if t < 3 else Q13f(s))
    W0 = lambda: I("s_waitcnt vmcnt(0)", "wait", vm=0)
    def gl(op, dst, n, va, sb, off):
        return I(f"{op} {rr('v', dst, n)},v{va},s[{sb}:{sb+1}] offset:{off}", "vmem", rd=V(va)+S(sb,2)+(V(dst) if "d16" in op else []), wr=V(dst, n), item=lambda ctx: ("slow",))
    L += lane_from_AL(230)
    L += [valu("v_and_b32 v231,15,v230", V(230), V(231)), valu("v_lshrrev_b32 v230,4,v230", V(230), V(230)),
          valu(f"v_lshlrev_b32 v{vKa},8,v231", V(231), V(vKa)), valu(f"v_lshl_add_u32 v{vKa},v230,4,v{vKa}", V(230)+V(vKa), V(vKa)),
          valu(f"v_lshlrev_b32 v{vVa},10,v230", V(230), V(vVa)), valu(f"v_lshl_add_u32 v{vVa},v231,1,v{vVa}", V(231)+V(vVa), V(vVa))]
    def head_base(dst, src):
        return [salu(f"s_lshl_b32 s{sSC},s{sHead},17", S(sHead), S(sSC))] + add64s(dst, src, sSC) + \
               [salu(f"s_sub_u32 s{dst},s{dst},{1024*w}\ns_subb_u32 s{dst+1},s{dst+1},0", S(dst,2), S(dst,2))]
    L += head_base(sSK, sK0)
    L += [valu(f"v_mov_b32 v{vM+t},0xff800000", [], V(vM+t)) for t in range(4)]
    L.append(salu(f"s_mov_b32 s{sSC},0", [], S(sSC)))
    L.append(I(f"{p.lbl('SL1')}:", "label"))
    L += [gl("global_load_dwordx4", KF+4*s, 4, vKa, sSK, 64*s) for s in range(4)]
    L.append(W0())
    for t in range(4):
        for s in range(4): L.append(gmfma(('v', SF+4*t), ('v', KF+4*s), Qop(t, s), None if s else 0))
    for t in range(4):
        r = SF+4*t
        L.append(valu(f"v_max3_f32 v{vM+t},v{vM+t},v{r},v{r+1}", V(vM+t)+V(r,2), V(vM+t)))
        L.append(valu(f"v_max3_f32 v{vM+t},v{vM+t},v{r+2},v{r+3}", V(vM+t)+V(r+2,2), V(vM+t)))
    L += add64(sSK, sSK, 4096)
    L.append(salu(f"s_add_u32 s{sSC},s{sSC},1", S(sSC), S(sSC)))
    L.append(I(f"s_cmp_lg_u32 s{sSC},32\ns_cbranch_scc1 {p.lbl('SL1')}", "branch"))
    for t in range(4):
        c = CREG + 4*t
        L += [valu(f"v_mov_b32 v{c},v{vM+t}", V(vM+t), V(c)), valu(f"v_mov_b32 v{c+1},v{c}", V(c), V(c+1)), perm16(c, c+1),
              valu(f"v_max_f32 v{c},v{c},v{c+1}", V(c,2), V(c)), valu(f"v_mov_b32 v{c+1},v{c}", V(c), V(c+1)), perm32(c, c+1),
              valu(f"v_max_f32 v{c},v{c},v{c+1}", V(c,2), V(c)), valu(f"v_mul_f32 v{c},-1.0,v{c}", V(c), V(c))]
        L += [valu(f"v_mov_b32 v{c+i},v{c}", V(c), V(c+i)) for i in range(1, 4)]
    L += head_base(sSK, sK0) + head_base(sSV, sV0)
    L += [valu(f"v_mov_b32 v{i},0", [], V(i)) for i in range(0, 120)]
    L.append(salu(f"s_mov_b32 s{sSC},0", [], S(sSC)))
    L.append(I(f"{p.lbl('SL2')}:", "label"))
    L += add64(sSK2, sSK, 4096) + add64(sSV2, sSV, 4096)
    for e in range(2):
        L += [gl("global_load_dwordx4", KF+16*e+4*s, 4, vKa, sSK if e == 0 else sSK2, 64*s) for s in range(4)]
    L.append(W0())
    for e in range(2):
        for t in range(4):
            for s in range(4):
                L.append(gmfma(('v', SF+16*e+4*t), ('v', KF+16*e+4*s), Qop(t, s), None if s else ('v', CREG+4*t)))
    for e in range(2):
        for t in range(4):
            r = SF+16*e+4*t
            L += [vexp(r+i) for i in range(4)]
    for e in range(2):
        for t in range(4):
            r = SF+16*e+4*t
            L += [vcvt(PF_+4*t+2*e, r, r+1), vcvt(PF_+4*t+2*e+1, r+2, r+3)]
    for dt in range(8):
        for e in range(2):
            for jj in range(4):
                L.append(gl("global_load_ushort", 236 + 4*e + jj, 1, vVa, sSV if e == 0 else sSV2, 256*jj + 32*dt))
        L.append(W0())
        for r in range(4):
            L.append(valu(f"v_lshl_or_b32 v{VF+r},v{236+2*r+1},16,v{236+2*r}", V(236+2*r,2), V(VF+r)))
        for qt in range(3): L.append(gmfma(('v', acc(dt, qt)), ('v', VF), ('v', PF_+4*qt), None))
        if dt >> 1 == w: L.append(gmfma(('v', acc13(dt & 1)), ('v', VF), ('v', PF_+12), None))
        L.append(I("s_nop 1", "nop", n=2))
    for t in range(4): L.append(gmfma(('v', LACC+4*t), ('a', ONES), ('v', PF_+4*t), None))
    L += add64(sSK, sSK, 8192) + add64(sSV, sSV, 8192)
    L.append(salu(f"s_add_u32 s{sSC},s{sSC},1", S(sSC), S(sSC)))
    L.append(I(f"s_cmp_lg_u32 s{sSC},16\ns_cbranch_scc1 {p.lbl('SL2')}", "branch"))
    L += [I("s_nop 7", "nop", n=8), I("s_nop 7", "nop", n=8)]
    return L
def safety_check(p):
    L = [I("s_nop 7", "nop", n=8)]
    L.append(valu(f"v_cmp_nge_f32 vcc,s{sThr},v{LACC}", V(LACC)+S(sThr), ["vcc"]))
    for t in range(1, 4):
        L.append(valu(f"v_cmp_nle_f32_e64 s[{sSK}:{sSK+1}],v{LACC+4*t},s{sThr}", V(LACC+4*t)+S(sThr), S(sSK,2)))
        L.append(I("s_nop 1", "nop", n=2))
        L.append(salu(f"s_or_b64 vcc,vcc,s[{sSK}:{sSK+1}]", S(sSK,2)+["vcc"], ["vcc"]))
    p.add_ool("SLOW", slow_path(p), "SLOW_r")
    L.append(I(f"s_cbranch_vccnz {p.lbl('SLOW')}", "branch", rd=["vcc"]))
    L.append(I(f"{p.lbl('SLOW_r')}:", "label"))
    return L

def epiB_common(p):
    L = []
    rl = vT
    pk = "nopk" not in EXPT
    for t in range(4):
        L.append(valu(f"v_rcp_f32 v{rl+2*t},v{LACC+4*t}", V(LACC+4*t), V(rl+2*t), kind="trans"))
    for s in range(4):
        for qt in range(3):
            a, b = acc(2*s, qt), acc(2*s+1, qt)
            L += scale4(a, f"v{rl+2*qt}", pk) + scale4(b, f"v{rl+2*qt}", pk)
            L += pack_pair(a, a, b)
    a, b = acc13(0), acc13(1)
    L += scale4(a, f"v{rl+6}", pk) + scale4(b, f"v{rl+6}", pk)
    L += pack_pair(a, a, b)
    return L
def epiB_head(w, h):
    L = [ds_w128(vAL, acc13(0), OFF_Q13[h] + 1024*w)]
    dst = (h+1) & 3
    if h < 3:
        for i in range(48): L.append(accm(i, 48*dst+i))
    for s in range(4):
        for qt in range(3):
            for r in range(4): L.append(accw(T(dst, s, qt)+r, acc(2*s, qt)+r))
    return L
def q13_reads(h):
    return [ds_r128(Q13f(s), vAL, OFF_Q13[h] + 1024*s) for s in range(4)]

def epiC(w):
    L = []
    for qt in range(3):
        Tq = 3*w + qt
        L += add64(sST, sWS, Tq*4096)
        for u in range(4):
            a, b = acc(2*u, qt), acc(2*u+1, qt)
            L += pack_pair(a, a, b)
            L.append(I(f"global_store_dwordx4 v{vAL},v[{a}:{a+3}],s[{sST}:{sST+1}] offset:{u*1024}", "vmem",
                       rd=V(vAL)+V(a,4)+S(sST,2)+["VMORD"], wr=["VMORD"], store=True, item=lambda ctx: ("st",)))
    L += add64(sST, sWS, 12*4096)
    a, b = acc13(0), acc13(1)
    L += pack_pair(a, a, b)
    L.append(I(f"global_store_dwordx4 v{vAL},v[{a}:{a+3}],s[{sST}:{sST+1}] offset:{w*1024}", "vmem",
               rd=V(vAL)+V(a,4)+S(sST,2)+["VMORD"], wr=["VMORD"], store=True, item=lambda ctx: ("st",)))
    return L

def wave_program(w):
    p = Prog(w)
    if PROFILE:
        p.add([salu("s_mov_b32 s54,0", [], S(54)), salu("s_mov_b32 s55,0", [], S(55)), salu("s_mov_b32 s62,0", [], S(62)), valu("v_accvgpr_write_b32 a252,0", [], A(252)), valu("v_accvgpr_write_b32 a254,0", [], A(254))])
        p.stamp()
    P = []
    a = lambda t, rd=(), wr=(): P.append(salu(t, rd, wr))
    for d, s_ in ((sWQT, sWQ), (sWOT, sWO)):
        a(f"s_mov_b32 s{d},s{s_}", S(s_), S(d)); a(f"s_mov_b32 s{d+1},s{s_+1}", S(s_+1), S(d+1))
    a(f"s_and_b32 s{sT0},s2,7", ["s2"], S(sT0))
    a(f"s_lshr_b32 s{sT1},s2,3", ["s2"], S(sT1))
    a(f"s_lshr_b32 s{sT2},s{sT1},3", S(sT1), S(sT2))
    a(f"s_lshl_b32 s{sT0},s{sT0},2", S(sT0), S(sT0))
    a(f"s_add_u32 s{sT0},s{sT0},s{sT2}", S(sT0)+S(sT2), S(sT0))
    a(f"s_and_b32 s{sT1},s{sT1},7", S(sT1), S(sT1))
    a(f"s_mul_i32 s{sT2},s{sT0},212992", S(sT0), S(sT2)); P += add64s(sX, sX, sT2)
    a(f"s_lshl_b32 s{sT2},s{sT0},22", S(sT0), S(sT2))
    a(f"s_lshl_b32 s{sT3},s{sT1},19", S(sT1), S(sT3))
    a(f"s_add_u32 s{sT2},s{sT2},s{sT3}", S(sT2)+S(sT3), S(sT2))
    a(f"s_add_u32 s{sT2},s{sT2},{4*w*256}", S(sT2), S(sT2))
    if "kvl2" in EXPT:
        a(f"s_mov_b32 s{sT2},{4*w*256}", [], S(sT2))
    P += add64s(sK0, sK0, sT2); P += add64s(sV0, sV0, sT2)
    rowoff = 4*(w >> 1) + 8*(w & 1)
    a(f"s_lshl_b32 s{sT2},s{sT1},10", S(sT1), S(sT2))
    a(f"s_add_u32 s{sT2},s{sT2},{rowoff*8192}", S(sT2), S(sT2))
    P += add64s(sWQ, sWQ, sT2)
    a(f"s_add_u32 s{sT2},s{sT3},{4*w*1024}", S(sT3), S(sT2))
    P += add64s(sWO, sWO, sT2)
    a(f"s_and_b32 s{sT2},s{sT0},3", S(sT0), S(sT2))
    a(f"s_lshl_b32 s{sTB},s{sT2},20", S(sT2), S(sTB))
    a(f"s_lshl_b32 s{sTB+1},s{sT1},10", S(sT1), S(sTB+1))
    a(f"s_add_u32 s{sTB},s{sTB},s{sTB+1}", S(sTB,2), S(sTB))
    P += add64s(sWQT, sWQT, sTB)
    a(f"s_lshl_b32 s{sTB},s{sT2},17", S(sT2), S(sTB))
    a(f"s_add_u32 s{sTB},s{sTB},s{sT3}", S(sTB)+S(sT3), S(sTB))
    P += add64s(sWOT, sWOT, sTB)
    a(f"s_lshl_b32 s{sT2},s{sT0},3", S(sT0), S(sT2))
    a(f"s_add_u32 s{sT2},s{sT2},s{sT1}", S(sT2)+S(sT1), S(sT2))
    a(f"s_mul_i32 s{sT2},s{sT2},212992", S(sT2), S(sT2))
    P += add64s(sWS, sWS, sT2)
    a(f"s_sub_u32 s{sWS},s{sWS},{R1}", S(sWS), S(sWS))
    a(f"s_subb_u32 s{sWS+1},s{sWS+1},0", S(sWS+1), S(sWS+1))
    a(f"s_mov_b32 s{sScale},{f2u(SCALE):#x}", [], S(sScale))
    a(f"s_mov_b32 s{sThr},{f2u(float(os.environ.get('THR', 2.0**40))):#x}", [], S(sThr))
    a(f"s_mov_b32 s{sPass},0", [], S(sPass))
    P += lane_consts(w)
    P += calc_aW(vAX, 255, 0, 1)
    P += calc_pat(vPat, 255, 0, 1, *PAT_WQ)
    P += [valu("v_and_b32 v2,15,v255", V(255), V(2)), valu("v_lshlrev_b32 v2,10,v2", V(2), V(2)),
          valu("v_lshrrev_b32 v3,4,v255", V(255), V(3)), valu("v_lshl_add_u32 v2,v3,4,v2", V(2)+V(3), V(2))]
    for i in range(4): P.append(I(f"v_accvgpr_write_b32 a{ONES+i},s{sT3}", "valu", rd=S(sT3), wr=A(ONES+i)))
    P.insert(len(P)-4, salu(f"s_mov_b32 s{sT3},0x3f803f80", [], S(sT3)))
    if TOUCH:
        a(f"s_mul_i32 s{sT2},s{sT1},26624", S(sT1), S(sT2)); P += add64s(sTB, sX, sT2)
        P += [valu(f"v_subrev_u32 v4,{R1},v{vAL}", V(vAL), V(4)), valu("v_min_u32 v4,816,v4", V(4), V(4)),
              valu("v_lshlrev_b32 v4,3,v4", V(4), V(4)), valu(f"v_add_u32 v4,{6656*w},v4", V(4), V(4)),
              I(f"global_load_dword a253,v4,s[{sTB}:{sTB+1}]", "vmem", rd=V(4)+S(sTB,2)+["VMORD"], wr=A(253)+["VMORD"], item=lambda ctx: ("touch",))]
        P += touch_slice(w, sWQT, 0, 13, tmp=5) + touch_slice(w, sWQT, 1, 13, tmp=6)
    V_ = lambda t, rd, wr: P.append(valu(t, rd, wr))
    V_("v_lshrrev_b32 v4,3,v255", V(255), V(4)); V_("v_lshrrev_b32 v5,1,v4", V(4), V(5)); V_("v_and_b32 v6,7,v255", V(255), V(6))
    V_("v_xor_b32 v7,v5,v6", V(5)+V(6), V(7)); V_("v_lshlrev_b32 v7,4,v7", V(7), V(7)); V_(f"v_lshl_add_u32 v{vXP},v4,10,v7", V(4)+V(7), V(vXP))
    V_(f"v_xor_b32 v{vXP+1},64,v{vXP}", V(vXP), V(vXP+1)); V_(f"v_add_u32 v{vXP+1},8192,v{vXP+1}", V(vXP+1), V(vXP+1))
    V_("v_and_b32 v4,15,v255", V(255), V(4)); V_("v_lshrrev_b32 v5,4,v255", V(255), V(5)); V_("v_lshrrev_b32 v6,1,v4", V(4), V(6))
    V_("v_xor_b32 v7,v5,v6", V(5)+V(6), V(7)); V_("v_lshlrev_b32 v7,4,v7", V(7), V(7)); V_(f"v_lshl_add_u32 v{vXR},v4,7,v7", V(4)+V(7), V(vXR))
    V_(f"v_xor_b32 v{vXR+1},64,v{vXR}", V(vXR), V(vXR+1))
    V_(f"v_add_u32 v{vXR+2},{4*SL},v{vXR}", V(vXR), V(vXR+2)); V_(f"v_add_u32 v{vXR+3},{4*SL},v{vXR+1}", V(vXR+1), V(vXR+3))
    V_("v_lshrrev_b32 v6,2,v4", V(4), V(6)); V_("v_sub_u32 v6,4,v6", V(6), V(6)); V_("v_and_b32 v6,3,v6", V(6), V(6))
    V_("v_xor_b32 v7,v5,v6", V(5)+V(6), V(7)); V_("v_lshlrev_b32 v7,4,v7", V(7), V(7)); V_(f"v_lshl_add_u32 v{vX13},v4,6,v7", V(4)+V(7), V(vX13))
    V_(f"v_add_u32 v{vX13},{R1},v{vX13}", V(vX13), V(vX13))
    V_("v_lshrrev_b32 v4,2,v255", V(255), V(4)); V_("v_sub_u32 v6,4,v5", V(5), V(6)); V_("v_and_b32 v6,3,v6", V(6), V(6))
    V_("v_and_b32 v7,3,v255", V(255), V(7)); V_("v_xor_b32 v7,v6,v7", V(6)+V(7), V(7)); V_("v_lshlrev_b32 v7,4,v7", V(7), V(7))
    V_(f"v_lshl_add_u32 v{vX13P},v4,10,v7", V(4)+V(7), V(vX13P))
    for qt in range(3): P += add64(XB[qt], sX, (48*w + 16*qt)*1024)
    P += add64(XB[3], sX, 192*1024 + 256*w)
    for q in range(3): P += p0_load(w, q)
    P.append(salu(f"s_mov_b32 m0,{R1 + 4096*w}", [], ["m0"]))
    for i in range(4):
        P.append(dma_next(vX13P, XB[3], 64*i, f"s_mov_b32 m0,{R1 + 4096*w + (i+1)*(1024-64)}" if i < 3 else None, item=lambda ctx: ("x13",)))
    for q in range(3, 8): P += p0_load(w, q)
    p.add(P); p.stamp(); P = []
    P += barrier(vm=0, needs=lambda ctx: [("wq", 0, 0), ("xA", 0), ("xB", 0), ("x13",)])
    body0, first0 = pass0_body(p)
    bodyA, b13A, _ = pass_body(p, "A")
    P += first0
    p.add(P)
    p.add([I("LG 0", "wait", lgkm=0)])
    p.stamp()
    if "p0nodma" in EXPT: body0 = [i for i in body0 if i.kind != "dma"]
    p.add(body0 + epiA_common(w), sched=True)
    p.add(epiA_head(w, 0))
    p.add(add64(sWQ, sWQ, 256) + [salu(f"s_add_u32 s{sPass},s{sPass},1", S(sPass), S(sPass))])
    p.label("LA")
    p.add([I("LG 0", "wait", lgkm=0)])
    p.stamp()
    if "Aonly" in EXPT: bodyA = expt_filter(bodyA)
    p.add(bodyA + epiA_common(w), sched=True)
    for h in range(1, 4):
        if h < 3:
            p.add([salu(f"s_cmp_eq_u32 s{sPass},{h}", S(sPass), ["scc"]), I(f"s_cbranch_scc0 {p.lbl('EA%d'%(h+1))}", "branch", rd=["scc"])])
        p.add(epiA_head(w, h))
        if h < 3:
            p.add(add64(sWQ, sWQ, 256) + [salu(f"s_add_u32 s{sPass},s{sPass},1", S(sPass), S(sPass)),
                   I(f"s_branch {p.lbl('LA')}", "branch")])
            p.label(f"EA{h+1}")
    p.stamp()
    P = []
    P += lane_from_AL(vT)
    P += calc_aK(vK0, vT, vT+1, vT+2)
    P += calc_aV(vV0, vT, vT+1, vT+2)
    P += calc_pat(vPat, vT, vT+1, vT+2, *PAT_KV)
    P += [valu(f"v_mov_b32 v{vPatV+j},v{vPat}", V(vPat), V(vPatV+j)) for j in range(4)]
    P += [salu(f"s_mov_b32 s{sKa},0", [], S(sKa)), salu(f"s_mov_b32 s{sKb},{SL}", [], S(sKb)),
          salu(f"s_mov_b32 s{sVa},{2*SL}", [], S(sVa)), salu(f"s_mov_b32 s{sVb},{7*SL}", [], S(sVb)),
          salu(f"s_mov_b32 s{sCnt},0", [], S(sCnt)), salu(f"s_mov_b32 s{sHead},0", [], S(sHead))]
    P += add64(sB, sK0, 4*16384) + add64(sVB, sV0, 3*16384)
    P += barrier(vm=None)
    p.add(P)
    p.label("LB")
    for h in range(4):
        if h < 3:
            p.add([salu(f"s_cmp_eq_u32 s{sHead},{h}", S(sHead), ["scc"]), I(f"s_cbranch_scc0 {p.lbl('QB%d'%(h+1))}", "branch", rd=["scc"])])
        p.add(q13_reads(h))
        if h < 3:
            p.add([I(f"s_branch {p.lbl('QBX')}", "branch")]); p.label(f"QB{h+1}")
    p.label("QBX")
    p.add([I("LG 0", "wait", lgkm=0),
           valu(f"v_mov_b32 v{vAK},v{vK0}", V(vK0), V(vAK))])
    p.stamp()
    p.add(att_pro(p), sched=True)
    p.add([I("LG 0", "wait", lgkm=0)])
    p.stamp()
    p.add(att_iter(p, 0, True, "It0"), sched=True)
    p.add([salu(f"s_mov_b32 s{sPass},3", [], S(sPass))])
    p.stamp()
    p.label("LI")
    p.add([I("LG 0", "wait", lgkm=0)])
    p.add(att_iter(p, 1, False, "ItO"), sched=True)
    p.add([I("LG 0", "wait", lgkm=0)])
    p.add(att_iter(p, 0, False, "ItE"), sched=True)
    p.add([salu(f"s_sub_u32 s{sPass},s{sPass},1", S(sPass), S(sPass)),
           salu(f"s_cmp_lg_u32 s{sPass},0", S(sPass), ["scc"]), I(f"s_cbranch_scc1 {p.lbl('LI')}", "branch", rd=["scc"])])
    p.add([I("LG 0", "wait", lgkm=0)])
    p.stamp()
    p.add(att_last(p), sched=True)
    p.add(safety_check(p))
    p.add(epiB_common(p))
    p.stamp()
    for h in range(4):
        if h < 3:
            p.add([salu(f"s_cmp_eq_u32 s{sHead},{h}", S(sHead), ["scc"]), I(f"s_cbranch_scc0 {p.lbl('EB%d'%(h+1))}", "branch", rd=["scc"])])
        p.add(epiB_head(w, h) + (touch_slice(w, sWOT, h-1, 10) if h in (1, 2) else []))
        if h < 3:
            p.add([salu(f"s_add_u32 s{sHead},s{sHead},1", S(sHead), S(sHead)), I(f"s_branch {p.lbl('LB')}", "branch")])
            p.label(f"EB{h+1}")
    P = []
    P += [valu(f"v_mov_b32 v{vAX},v{vV0}", V(vV0), V(vAX)), salu(f"s_mov_b32 s{sPass},0", [], S(sPass))]
    P += barrier(vm=24, needs=lambda ctx: [("wo", 0, 0)])
    stC = epiC_stores(w, True, True)
    if "nostore" in EXPT: stC = []
    groups = {}; cur = []; ns = 0; c = 0
    for i in stC:
        cur.append(i)
        if i.kind == "vmem":
            ns += 1
            if ns % 2 == 0 or ns == 13: groups[c] = cur; cur = []; c += 1
    bodyC, b13C, _ = pass_body(p, "C", extra=groups)
    P += proj_reads("V", 0, 0, 0) + b13C(0)
    P += add64(sB, sWO, 7*64*1024)
    p.add(P)
    p.add([salu(f"s_mov_b64 s[{sMask}:{sMask+1}],0", [], S(sMask,2))])
    p.label("LC")
    p.add([I("LG 0", "wait", lgkm=0)])
    p.stamp()
    p.add(bodyC + epiC_cvt(w), sched=True)
    p.stamp()
    p.add(add64(sWO, sWO, 0 if "wosame" in EXPT else 256) +
          [salu(f"s_cmp_eq_u32 s{sPass},0\ns_cselect_b32 s{sT0},0,53248", S(sPass), S(sT0))] + add64s(sWS, sWS, sT0) +
          [salu(f"s_mov_b64 s[{sMask}:{sMask+1}],-1", [], S(sMask,2)),
           salu(f"s_add_u32 s{sPass},s{sPass},1", S(sPass), S(sPass)),
           salu(f"s_cmp_lg_u32 s{sPass},4", S(sPass), ["scc"]), I(f"s_cbranch_scc1 {p.lbl('LC')}", "branch", rd=["scc"])])
    p.add(epiC_stores(w, False, False))
    p.stamp()
    p.add([I("s_waitcnt vmcnt(0) lgkmcnt(0)", "wait", lgkm=0, vm=0)])
    p.stamp()
    if "bartime" in EXPT:
        for sr in (54, 55):
            p.add([valu("v_accvgpr_read_b32 v255,a252", A(252), V(255)), salu("s_mov_b32 m0,s62", S(62), ["m0"]), I("s_nop 1", "nop", n=2),
                   valu(f"v_writelane_b32 v255,s{sr},m0", V(255), V(255)), I("s_nop 1", "nop", n=2),
                   valu("v_accvgpr_write_b32 a252,v255", V(255), A(252)), salu("s_add_u32 s62,s62,1", S(62), S(62))])
    p.stamp_flush()
    p.add([I("s_waitcnt vmcnt(0) lgkmcnt(0)", "wait", lgkm=0, vm=0), I("s_endpgm", "end")])
    return p

HEADER = open("standalone__mha_block_cached__near_ridge.s.ref").read().split("; Override launch")[0]

def kd(name, vgpr, accum, sgpr=96):
    return f""".section .rodata,"a"
.p2align 6
.amdhsa_kernel {name}
  .amdhsa_next_free_vgpr {vgpr}
  .amdhsa_next_free_sgpr {sgpr}
  .amdhsa_accum_offset {accum}
  .amdhsa_group_segment_fixed_size 0
  .amdhsa_kernarg_size 64
  .amdhsa_user_sgpr_count 2
  .amdhsa_user_sgpr_kernarg_segment_ptr 1
  .amdhsa_system_sgpr_workgroup_id_x 1
  .amdhsa_float_denorm_mode_32 3
.end_amdhsa_kernel
"""

RED_WGS = 832
def reduce_kernel():
    n = "mha_reduce_kernel"
    L = []
    a = L.append
    a(f".text\n.globl {n}\n.p2align 8\n.type {n},@function\n{n}:")
    a(f"s_cmp_ge_u32 s2,{RED_WGS}"); a("s_cbranch_scc1 RED_END")
    a("s_load_dwordx2 s[4:5],s[0:1],56"); a("s_load_dwordx2 s[6:7],s[0:1],40")
    a("v_lshrrev_b32 v1,6,v0"); a("s_nop 0"); a("v_readfirstlane_b32 s8,v1")
    a("s_lshl_b32 s9,s2,2"); a("s_nop 2"); a("s_add_u32 s8,s8,s9")
    a(f"s_mul_hi_u32 s10,s8,{(1<<32)//104+1}")
    a("s_mul_i32 s11,s10,104"); a("s_sub_u32 s11,s8,s11")
    a(f"s_mul_hi_u32 s12,s11,{(1<<32)//26+1}")
    a("s_mul_i32 s13,s12,26"); a("s_sub_u32 s13,s11,s13")
    a("s_mul_i32 s14,s10,1703936"); a("s_mul_i32 s15,s12,53248"); a("s_add_u32 s14,s14,s15")
    a("s_lshl_b32 s15,s13,11"); a("s_add_u32 s14,s14,s15")
    a("v_and_b32 v2,63,v0"); a("v_lshlrev_b32 v3,4,v2")
    a("s_waitcnt lgkmcnt(0)")
    a("s_add_u32 s4,s4,s14"); a("s_addc_u32 s5,s5,0")
    for g in range(8):
        a(f"global_load_dwordx4 v[{8+8*g}:{11+8*g}],v3,s[4:5]")
        a(f"global_load_dwordx4 v[{12+8*g}:{15+8*g}],v3,s[4:5] offset:1024")
        if g < 7:
            a("s_add_u32 s4,s4,212992"); a("s_addc_u32 s5,s5,0")
    a("s_lshr_b32 s16,s13,1"); a("s_and_b32 s17,s13,1")
    a("s_mul_i32 s18,s10,208"); a("s_lshl_b32 s16,s16,4"); a("s_add_u32 s18,s18,s16"); a("s_lshl_b32 s18,s18,10")
    a("s_lshl_b32 s19,s12,8"); a("s_add_u32 s18,s18,s19"); a("s_lshl_b32 s19,s17,7"); a("s_add_u32 s18,s18,s19")
    a("s_add_u32 s6,s6,s18"); a("s_addc_u32 s7,s7,0")
    a("v_and_b32 v4,15,v2"); a("v_lshlrev_b32 v4,7,v4"); a("v_lshrrev_b32 v5,4,v2"); a("v_lshl_add_u32 v4,v5,4,v4")
    a("v_lshlrev_b32 v5,11,v1"); a("v_add_u32 v4,v4,v5"); a("v_add_u32 v100,v3,v5")
    a("v_lshrrev_b32 v101,3,v2"); a("v_lshlrev_b32 v101,10,v101"); a("v_and_b32 v102,7,v2"); a("v_lshl_add_u32 v101,v102,4,v101")
    a("s_mov_b32 s20,0xffff0000")
    for g in range(8):
        a(f"s_waitcnt vmcnt({14-2*g})")
        for i in range(8):
            r = 8+8*g+i
            if g == 0:
                a(f"v_lshlrev_b32 v{72+2*i},16,v{r}"); a(f"v_and_b32 v{73+2*i},s20,v{r}")
            else:
                a(f"v_lshlrev_b32 v6,16,v{r}"); a(f"v_and_b32 v7,s20,v{r}")
                a(f"v_add_f32 v{72+2*i},v{72+2*i},v6"); a(f"v_add_f32 v{73+2*i},v{73+2*i},v7")
    for i in range(8): a(f"v_cvt_pk_bf16_f32 v{88+i},v{72+2*i},v{73+2*i}")
    a("s_nop 1")
    for e in range(2):
        r = 88+4*e
        a(f"v_permlane32_swap_b32 v{r},v{r+2}"); a(f"v_permlane32_swap_b32 v{r+1},v{r+3}")
    a("s_nop 1")
    for e in range(2):
        r = 88+4*e
        a(f"v_permlane16_swap_b32 v{r},v{r+2}"); a(f"v_permlane16_swap_b32 v{r+1},v{r+3}")
    a("s_nop 1")
    a("ds_write_b128 v4,v[88:91]"); a("ds_write_b128 v4,v[92:95] offset:64"); a("s_waitcnt lgkmcnt(0)")
    a("ds_read_b128 v[88:91],v100"); a("ds_read_b128 v[92:95],v100 offset:1024"); a("s_waitcnt lgkmcnt(1)")
    a("global_store_dwordx4 v101,v[88:91],s[6:7]")
    a("s_add_u32 s6,s6,8192"); a("s_addc_u32 s7,s7,0"); a("s_waitcnt lgkmcnt(0)")
    a("global_store_dwordx4 v101,v[92:95],s[6:7]")
    a("RED_END:"); a("s_endpgm")
    return "\n".join(L) + "\n" + kd(n, 104, 104, 32)

def main():
    n = "mha_main_kernel"
    progs = [wave_program(w) for w in range(4)]
    if "noautovm" not in EXPT:
        import trace as _tr
        for p in progs: _tr.auto_vmcnt(p)
    if "cvm63" in EXPT:
        import re as _re
        for p in progs:
            seen = False
            for i in p.main:
                if i.kind == "label" and i.txt.startswith("LC_"): seen = True
                if seen and i.kind == "wait" and i.meta.get("needs"): i.txt = _re.sub(r"vmcnt\(\d+\)", "vmcnt(63)", i.txt)
    out = [HEADER.rstrip("\n")]
    out.append(f"; @launch kernel={n} grid=(256,1,1) block=(256,1,1) lds={LDS_BYTES}")
    out.append(f"; @launch kernel=mha_reduce_kernel grid=({RED_WGS},1,1) block=(256,1,1) lds=8192")
    out.append('.amdgcn_target "amdgcn-amd-amdhsa--gfx950"')
    out.append(MACROS)
    out.append(f".text\n.globl {n}\n.p2align 8\n.type {n},@function\n{n}:")
    E = ["s_cmp_ge_u32 s2,256", "s_cbranch_scc0 GO", "s_endpgm", "GO:",
         "s_load_dwordx4 s[4:7],s[0:1],0", "s_load_dwordx4 s[8:11],s[0:1],16", "s_load_dwordx2 s[12:13],s[0:1],32",
         "s_load_dwordx2 s[14:15],s[0:1],56",
         "v_lshrrev_b32 v1,6,v0", "s_nop 0", "v_readfirstlane_b32 s28,v1"]
    if ICWARM:
        E += ["s_getpc_b64 s[30:31]", "PCW:", f"s_sub_u32 s30,s30,PCW-{n}", "s_subb_u32 s31,s31,0",
              "s_lshr_b32 s29,s2,3", "s_lshl_b32 s29,s29,8", "v_add_u32 v2,s29,v0", "v_lshlrev_b32 v2,7,v2",
              f"v_min_u32 v2,CODE_END-{n}-4,v2", "global_load_dword a253,v2,s[30:31]"]
    E += ["s_waitcnt lgkmcnt(0)"]
    for w in range(1, 4):
        E += [f"s_cmp_eq_u32 s28,{w}", f"s_cbranch_scc0 NX{w}", "s_getpc_b64 s[30:31]", f"PC{w}:",
              f"s_add_u32 s30,s30,W{w}-PC{w}", "s_addc_u32 s31,s31,0", "s_setpc_b64 s[30:31]", f"NX{w}:"]
    out += E
    for w, p in enumerate(progs):
        out.append(".p2align 6"); out.append(f"W{w}:")
        out += [i.txt for i in p.main]
        out += [i.txt for i in p.ool]
    red = reduce_kernel()
    i_ = red.index(".section .rodata")
    out.append(red[:i_])
    out.append("CODE_END:")
    out.append(kd(n, 512, 256))
    out.append(red[i_:])
    txt = "\n".join(out) + "\n"
    return txt, progs

if __name__ == "__main__":
    txt, progs = main()
    dst = sys.argv[1] if len(sys.argv) > 1 else "standalone__mha_block_cached__near_ridge.s"
    open(dst, "w").write(txt)
    print("bytes", len(txt), "instrs/wave", [len(p.main)+len(p.ool) for p in progs])
```
